```python
import torch

def _softmax(x, axis=-1):
    return torch.softmax(x, dim=axis)

def _gelu(x):
    return torch.nn.functional.gelu(x, approximate='tanh')

def _silu(x):
    return torch.nn.functional.silu(x)

def _sigmoid(x):
    return torch.sigmoid(x)

def _layernorm(x, axis=-1, eps=1e-05):
    m = x.mean(dim=axis, keepdim=True)
    v = x.var(dim=axis, keepdim=True, unbiased=False)
    return (x - m) / torch.sqrt(v + eps)

def _scatter_add(tgt, idx, src, axis=0):
    return tgt.clone().index_add_(axis, idx, src)

def _segment_sum(src, seg, n):
    out = torch.zeros((n,) + src.shape[1:], dtype=src.dtype)
    return out.index_add_(0, seg, src)

def _pad(x, pw):
    flat = tuple((v for pair in reversed(pw) for v in pair))
    return torch.nn.functional.pad(x, flat)
kernel_name = 'adaLN_cond__ssm_conv_s4__glu_gated_bilinear__prompt'

def setup_inputs():

    _w = lambda a: (lambda t: t.to(torch.bfloat16) if t.is_floating_point() else t)(torch.as_tensor(a))

    def _A_setup():
        B, L, D, N = (1, 2048, 448, 256)
        A_re = -(lambda _x: torch.exp(torch.as_tensor(_x)))((lambda *s: torch.randn(*s, dtype=torch.bfloat16) * 3.2)(D, N))
        A_im = torch.pi * (lambda *s: torch.randn(*s, dtype=torch.bfloat16) * 0.1)(D, N)
        B_re = (lambda *s: torch.randn(*s, dtype=torch.bfloat16) * 0.1)(D, N)
        B_im = (lambda *s: torch.randn(*s, dtype=torch.bfloat16) * 0.1)(D, N)
        C_re = (lambda *s: torch.randn(*s, dtype=torch.bfloat16) * 0.1)(D, N)
        C_im = (lambda *s: torch.randn(*s, dtype=torch.bfloat16) * 0.1)(D, N)
        log_dt = (lambda *s: torch.randn(*s, dtype=torch.bfloat16) * 0.1)(D) * 0.5 - 4.0
        Dskip = (lambda *s: torch.randn(*s, dtype=torch.bfloat16) * 0.1)(D)
        return {'u': _w((lambda *s: torch.randn(*s, dtype=torch.bfloat16) * 0.05)(B, L, D)), 'A_re': _w(A_re), 'A_im': _w(A_im), 'B_re': _w(B_re), 'B_im': _w(B_im), 'C_re': _w(C_re), 'C_im': _w(C_im), 'log_dt': _w(log_dt), 'Dskip': _w(Dskip)}
    _A_in = _A_setup()

    def _B_setup():
        B, S, D, F = (1, 2048, 448, 1792)
        return {'x': _w((lambda *s: torch.randn(*s, dtype=torch.bfloat16) * 0.05)(B, S, D)), 'w_gate': _w((lambda *s: torch.randn(*s, dtype=torch.bfloat16) * 1.6)(D, F) * D ** (-0.5)), 'w_up': _w((lambda *s: torch.randn(*s, dtype=torch.bfloat16) * 1.6)(D, F) * D ** (-0.5)), 'w_down': _w((lambda *s: torch.randn(*s, dtype=torch.bfloat16) * 1.6)(F, D) * F ** (-0.5))}
    _B_in = _B_setup()
    return {'A_u': _A_in['u'], 'A_A_re': _A_in['A_re'], 'A_A_im': _A_in['A_im'], 'A_B_re': _A_in['B_re'], 'A_B_im': _A_in['B_im'], 'A_C_re': _A_in['C_re'], 'A_C_im': _A_in['C_im'], 'A_log_dt': _A_in['log_dt'], 'A_Dskip': _A_in['Dskip'], 'B_x': _B_in['x'], 'B_w_gate': _B_in['w_gate'], 'B_w_up': _B_in['w_up'], 'B_w_down': _B_in['w_down'], 'c': _w((lambda *s: torch.randn(*s, dtype=torch.bfloat16) * 0.2)(1, 448) * 8.0), 'w_mod': _w((lambda *s: torch.randn(*s, dtype=torch.bfloat16) * 0.2)(448, 6 * 448) * 448 ** (-0.5) * 8.0)}

def reference(A_u, A_A_re, A_A_im, A_B_re, A_B_im, A_C_re, A_C_im, A_log_dt, A_Dskip, B_x, B_w_gate, B_w_up, B_w_down, c, w_mod):

    def _A_ref(u, A_re, A_im, B_re, B_im, C_re, C_im, log_dt, Dskip):
        Bsz, L, D = u.shape
        dt = torch.exp(log_dt)[:, None]
        A = A_re + 1j * A_im
        Bc = B_re + 1j * B_im
        Cc = C_re + 1j * C_im
        logdA = dt * A
        dB = dt * Bc
        l = (lambda x, dt: x.to(dt))(torch.arange(L), A_re.dtype)
        P = torch.exp(logdA[:, :, None] * l[None, None, :])
        K = torch.einsum('dn,dnl,dn->dl', Cc, P, dB).real
        L2 = 2 * L
        Kp = _pad(K, ((0, 0), (0, L)))
        up = (lambda x, *d: x.permute(*d))(u, 0, 2, 1)
        up = _pad(up, ((0, 0), (0, 0), (0, L)))
        Kf = (lambda x, axes=(-2, -1): torch.fft.rfft2(x.float(), dim=axes))(Kp[:, None, :], axes=(-2, -1))
        Uf = (lambda x, axes=(-2, -1): torch.fft.rfft2(x.float(), dim=axes))(up[:, :, None, :], axes=(-2, -1))
        Yf = Uf * Kf[None, :, :, :]
        y = (lambda x, s, axes=(-2, -1): torch.fft.irfft2(x, s=s, dim=axes).to(torch.bfloat16))(Yf, (1, L2), axes=(-2, -1))[:, :, 0, :L]
        y = (lambda x, *d: x.permute(*d))(y, 0, 2, 1) + u * Dskip[None, None, :]
        return y

    def _B_ref(x, w_gate, w_up, w_down):
        g = torch.einsum('bsd,df->bsf', x, w_gate)
        u = torch.einsum('bsd,df->bsf', x, w_up)
        h = g * u
        return torch.einsum('bsf,fd->bsd', h, w_down)
    x = A_u
    mod = (_silu(c) @ w_mod).reshape(c.shape[0], 6, 1, -1)
    sa, ca, ga, sb, cb, gb = (mod[:, 0].clone(), mod[:, 1].clone(), mod[:, 2].clone(), mod[:, 3].clone(), mod[:, 4].clone(), mod[:, 5].clone())
    h = _layernorm(x, axis=-1) * (1 + ca) + sa
    x = x + ga * _A_ref(h, A_A_re, A_A_im, A_B_re, A_B_im, A_C_re, A_C_im, A_log_dt, A_Dskip)
    h = _layernorm(x, axis=-1) * (1 + cb) + sb
    x = x + gb * _B_ref(h, B_w_gate, B_w_up, B_w_down)
    return x
```

```python
import re, copy

def v(n, c=1):
    return f'v{n}' if c == 1 else f'v[{n}:{n+c-1}]'
def s(n, c=1):
    return f's{n}' if c == 1 else f's[{n}:{n+c-1}]'

_REG = re.compile(r'^(-?)(\|?)(abs\()?([vsa])(?:(\d+)|\[(\d+):(\d+)\])\)?\|?$')

def regs_of(tok):
    tok = tok.strip()
    if tok in ('vcc', 'exec', 'm0', 'scc'):
        return {tok}
    if tok in ('vcc_lo', 'vcc_hi'):
        return {'vcc'}
    if tok in ('exec_lo', 'exec_hi'):
        return {'exec'}
    m = _REG.match(tok)
    if not m:
        return set()
    k = m.group(4)
    if m.group(5) is not None:
        return {k + m.group(5)}
    return {k + str(i) for i in range(int(m.group(6)), int(m.group(7)) + 1)}

def split_ops(text):
    out, depth, cur = [], 0, ''
    for ch in text:
        if ch in '[(':
            depth += 1
        if ch in '])':
            depth -= 1
        if ch == ',' and depth == 0:
            out.append(cur.strip()); cur = ''
        else:
            cur += ch
    if cur.strip():
        out.append(cur.strip())
    mods = ''
    if out:
        parts = out[-1].split(None, 1)
        if len(parts) == 2:
            out[-1] = parts[0]; mods = parts[1]
    return out, mods

TRANS = ('v_exp_f32', 'v_log_f32', 'v_rcp_f32', 'v_rsq_f32', 'v_sqrt_f32', 'v_sin_f32', 'v_cos_f32', 'v_rcp_iflag_f32')

class Ins:
    __slots__ = ('text', 'op', 'kind', 'wr', 'rd', 'dpp', 'trans', 'passes', 'srcC', 'srcAB', 'wide_store', 'stdata', 'ldsdma', 'states', 'permlane', 'rdlane', 'dot')

def parse(text):
    t = text.split(';')[0].strip()
    sp = t.split(None, 1)
    op = sp[0]
    ops, mods = split_ops(sp[1]) if len(sp) > 1 else ([], '')
    I = Ins(); I.text = text; I.op = op; I.wr = set(); I.rd = set(); I.dpp = False; I.trans = False
    I.passes = 0; I.srcC = set(); I.srcAB = set(); I.wide_store = False; I.stdata = set(); I.ldsdma = False
    I.states = 1; I.permlane = False; I.rdlane = False; I.dot = False
    R = [regs_of(o) for o in ops]
    allmods = ' ' + mods + ' '
    def rd(*idx):
        for i in idx:
            if i < len(R): I.rd |= R[i]
    if op.startswith('v_mfma'):
        I.kind = 'mfma'; I.wr = R[0]; rd(1, 2, 3); I.srcC = R[3]; I.srcAB = R[1] | R[2]
        I.passes = 8 if '32x32x16' in op else 4 if '16x16x32' in op else None
        assert I.passes
    elif op.startswith('v_'):
        I.kind = 'valu'
        base = re.sub(r'_(e32|e64|dpp|sdwa)$', '', op)
        I.trans = base in TRANS
        I.dpp = op.endswith('_dpp')
        I.dot = base.startswith('v_dot')
        if base.startswith('v_cmpx'):
            I.wr = R[0] | {'exec'}; rd(*range(1, len(R)))
        elif base.startswith('v_cmp'):
            I.wr = R[0]; rd(*range(1, len(R)))
        elif base in ('v_readfirstlane_b32', 'v_readlane_b32'):
            I.wr = R[0]; rd(*range(1, len(R))); I.rdlane = True
        elif base.startswith('v_permlane') and 'swap' in base:
            I.wr = R[0] | R[1]; rd(0, 1); I.permlane = True
        elif base in ('v_add_co_u32', 'v_sub_co_u32', 'v_addc_co_u32', 'v_subb_co_u32', 'v_mad_u64_u32', 'v_div_scale_f32'):
            I.wr = R[0] | R[1]; rd(*range(2, len(R)))
        elif base == 'v_nop':
            pass
        else:
            I.wr = R[0]; rd(*range(1, len(R)))
            if base.startswith(('v_fmac', 'v_dot2c', 'v_dot4c', 'v_pk_fmac', 'v_writelane')) or I.dpp or op.endswith('_sdwa'):
                rd(0)
            if base == 'v_cndmask_b32' and len(R) == 3:
                I.rd.add('vcc')
        I.rd.add('exec')
    elif op.startswith('ds_'):
        I.kind = 'ds'
        if op.startswith(('ds_read', 'ds_bpermute', 'ds_permute', 'ds_swizzle')) or '_rtn' in op:
            I.wr = R[0]; rd(*range(1, len(R)))
        else:
            rd(*range(len(R)))
    elif op.startswith(('buffer_', 'global_')):
        I.kind = 'vmem'
        if op in ('buffer_inv', 'buffer_wbl2'):
            pass
        elif ' lds ' in allmods or op.startswith('global_load_lds'):
            I.ldsdma = True; rd(*range(len(R))); I.rd.add('m0')
        elif '_load' in op:
            I.wr = R[0]; rd(*range(1, len(R)))
        elif '_atomic' in op:
            rd(*range(len(R)))
            if ' sc0 ' in allmods:
                I.wr = R[0]
        else:
            rd(*range(len(R)))
            data = R[0] if op.startswith('buffer_') else R[1]
            I.stdata = data
            I.wide_store = op.endswith(('x3', 'x4'))
    elif op.startswith('s_'):
        if op.startswith(('s_load', 's_buffer_load', 's_memtime', 's_memrealtime')):
            I.kind = 'smem'; I.wr = R[0]; rd(*range(1, len(R)))
        elif op == 's_nop':
            I.kind = 'nop'; I.states = int(ops[0], 0) + 1
        elif op in ('s_waitcnt', 's_barrier', 's_sleep', 's_setprio', 's_endpgm', 's_branch') or op.startswith('s_cbranch'):
            I.kind = 'ctl'
            if 'vcc' in op: I.rd.add('vcc')
            if 'exec' in op: I.rd.add('exec')
        elif op.startswith('s_cmp') or op.startswith('s_bitcmp'):
            I.kind = 'salu'; rd(*range(len(R)))
        elif 'saveexec' in op:
            I.kind = 'salu'; I.wr = R[0] | {'exec'}; rd(1); I.rd.add('exec')
        else:
            I.kind = 'salu'; I.wr = R[0]; rd(*range(1, len(R)))
            if op in ('s_addk_i32', 's_mulk_i32', 's_cmov_b32', 's_cmov_b64'): rd(0)
    else:
        raise ValueError('unknown op ' + text)
    return I

def isv(r): return r[0] in 'va' and r not in ('vcc',)
def iss(r): return r[0] == 's' and r != 'scc' or r in ('vcc', 'exec', 'm0')

class Asm:
    def __init__(self):
        self.out = []
        self.hist = []
        self.vm = []
        self.lg = []
        self.auto_wait = True
        self.nnop = 0
    def snap(self):
        return (list(self.hist), copy.deepcopy(self.vm), copy.deepcopy(self.lg))
    def restore(self, st):
        self.hist = list(st[0]); self.vm = copy.deepcopy(st[1]); self.lg = copy.deepcopy(st[2])
    def raw(self, text):
        self.out.append(text)
    def comment(self, text):
        self.out.append('    ; ' + text)
    def label(self, name, reset=True):
        self.out.append(name + ':')
    def _push(self, I):
        self.out.append('    ' + I.text)
        self.hist.append(I)
        if len(self.hist) > 40:
            self.hist = self.hist[-40:]
    def wait(self, vm=None, lg=None):
        parts = []
        if vm is not None:
            if len(self.vm) > vm or not self.auto_wait:
                parts.append(f'vmcnt({min(vm, 63)})')
            self.vm = self.vm[len(self.vm) - vm:] if vm < len(self.vm) and vm > 0 else ([] if vm == 0 else self.vm)
        if lg is not None:
            if len(self.lg) > lg or not self.auto_wait:
                parts.append(f'lgkmcnt({min(lg, 15)})')
            self.lg = self.lg[len(self.lg) - lg:] if lg < len(self.lg) and lg > 0 else ([] if lg == 0 else self.lg)
        if parts:
            self._push(parse('s_waitcnt ' + ' '.join(parts)))
    def force_wait(self, vm=None, lg=None):
        parts = []
        if vm is not None:
            parts.append(f'vmcnt({vm})'); self.vm = self.vm[len(self.vm) - vm:] if 0 < vm < len(self.vm) else ([] if vm == 0 else self.vm)
        if lg is not None:
            parts.append(f'lgkmcnt({lg})'); self.lg = self.lg[len(self.lg) - lg:] if 0 < lg < len(self.lg) else ([] if lg == 0 else self.lg)
        self._push(parse('s_waitcnt ' + ' '.join(parts)))
    def _auto_waits(self, I):
        touched = I.rd | I.wr
        nvm = None
        for i in range(len(self.vm) - 1, -1, -1):
            hit = self.vm[i] & touched
            if hit:
                if I.kind == 'vmem' and not (self.vm[i] & I.rd) and 'd16' in I.op:
                    continue
                nvm = len(self.vm) - 1 - i
                break
        nlg = None
        smem_pending = any(k == 'smem' for k, _ in self.lg)
        for i in range(len(self.lg) - 1, -1, -1):
            k, r = self.lg[i]
            if r & touched:
                if I.kind == 'ds' and not (r & I.rd) and 'd16' in I.op:
                    continue
                nlg = 0 if smem_pending else len(self.lg) - 1 - i
                break
        if nvm is not None and nvm > 63:
            nvm = 63
        if nlg is not None and nlg > 15:
            nlg = 15
        self.wait(nvm, nlg)
    def _need(self, I):
        need = 0
        dist = 0
        for P in reversed(self.hist):
            req = 0
            pv = {r for r in P.wr if isv(r)}
            ps = {r for r in P.wr if not isv(r)}
            if P.kind == 'valu':
                if I.kind == 'mfma' and pv & I.rd: req = max(req, 2)
                if I.kind == 'mfma' and 'exec' in P.wr: req = max(req, 4)
                if I.kind == 'vmem' and (ps - {'exec'}) & I.rd: req = max(req, 5)
                if I.kind == 'valu':
                    if (ps - {'exec'}) & I.rd: req = max(req, 4 if (I.rdlane or I.op.startswith('v_writelane')) else 2)
                    if I.dpp and pv & I.rd: req = max(req, 2)
                    if I.dpp and 'exec' in P.wr: req = max(req, 5)
                    if I.rdlane and pv & I.rd: req = max(req, 1)
                    if (I.rdlane or I.permlane) and 'exec' in P.wr: req = max(req, 4)
                    if I.permlane and pv & I.rd: req = max(req, 2)
                    if P.trans and not I.trans and pv & I.rd: req = max(req, 1)
                    if P.op.endswith('_sdwa') and pv & (I.rd | I.wr): req = max(req, 1)
                    if P.dot and pv & (I.rd | I.wr):
                        same = re.sub(r'_(e32|e64)$', '', P.op) == re.sub(r'_(e32|e64)$', '', I.op)
                        if not same: req = max(req, 3)
                        else:
                            ops, _ = split_ops(I.text.split(';')[0].split(None, 1)[1])
                            ab = regs_of(ops[1]) | regs_of(ops[2])
                            if pv & ab: req = max(req, 3)
                if P.dot and I.kind in ('mfma', 'vmem', 'ds') and pv & I.rd: req = max(req, 3)
                if I.kind == 'ctl' and I.op in ('s_cbranch_vccz', 's_cbranch_vccnz', 's_cbranch_execz', 's_cbranch_execnz') and ps & I.rd:
                    req = max(req, 5)
                if I.kind == 'salu' and ps & I.rd: req = max(req, 1)
            elif P.kind == 'mfma':
                big = 12 if P.passes == 8 else 8
                if I.kind == 'mfma':
                    if P.wr & I.srcAB: req = max(req, big)
                    if P.wr & I.srcC and not (P.wr == I.srcC and P.passes == I.passes): req = max(req, big - 2)
                    if P.wr & I.wr and not (P.wr & I.srcC): req = max(req, big)
                elif I.kind in ('valu', 'vmem', 'ds'):
                    if P.wr & (I.rd | I.wr): req = max(req, big)
                    if I.kind == 'valu' and P.srcC & I.wr: req = max(req, 7 if P.passes == 8 else 3)
            elif P.kind == 'vmem':
                if P.wide_store and P.stdata & I.wr: req = max(req, 2)
            elif P.kind == 'salu':
                if 'm0' in P.wr and (I.ldsdma or 'addtid' in I.op): req = max(req, 1)
            if P.kind == 'ds' and P.op in ('ds_write_b128', 'ds_write_b96') and False:
                pass
            need = max(need, req - dist)
            dist += P.states
            if dist >= 20:
                break
        return need
    def __call__(self, text):
        for line in text.split('\n'):
            line = line.strip()
            if not line or line.startswith(';'):
                continue
            I = parse(line)
            if self.auto_wait:
                self._auto_waits(I)
            n = self._need(I)
            while n > 0:
                k = min(n, 16)
                self._push(parse(f's_nop {k-1}')); self.nnop += 1
                n -= k
            self._push(I)
            if I.kind == 'vmem' and I.op not in ('buffer_inv', 'buffer_wbl2'):
                self.vm.append(set(I.wr))
            elif I.kind == 'vmem':
                self.vm.append(set())
            elif I.kind == 'ds':
                self.lg.append(('ds', set(I.wr)))
            elif I.kind == 'smem':
                self.lg.append(('smem', set(I.wr)))
                self.lg.append(('smem', set()))
            elif I.op == 's_waitcnt':
                m = re.search(r'vmcnt\((\d+)\)', line)
                if m:
                    k = int(m.group(1)); self.vm = self.vm[len(self.vm) - k:] if 0 < k < len(self.vm) else ([] if k == 0 else self.vm)
                m = re.search(r'lgkmcnt\((\d+)\)', line)
                if m:
                    k = int(m.group(1)); self.lg = self.lg[len(self.lg) - k:] if 0 < k < len(self.lg) else ([] if k == 0 else self.lg)
    def barrier(self, lds=True):
        if lds:
            self.wait(lg=0)
        self('s_barrier')
    def text(self):
        return '\n'.join(self.out) + '\n'

HEADER = '.amdgcn_target "amdgcn-amd-amdhsa--gfx950"\n.text\n'
def kernel_text(name, body):
    return f'.globl {name}\n.p2align 8\n.type {name},@function\n{name}:\n{body}'
def kernel_desc(name, vgpr, sgpr):
    return f""".p2align 6
.amdhsa_kernel {name}
  .amdhsa_next_free_vgpr {vgpr}
  .amdhsa_next_free_sgpr {sgpr}
  .amdhsa_accum_offset {(vgpr + 3) // 4 * 4}
  .amdhsa_group_segment_fixed_size 0
  .amdhsa_kernarg_size 144
  .amdhsa_user_sgpr_count 2
  .amdhsa_user_sgpr_kernarg_segment_ptr 1
  .amdhsa_system_sgpr_workgroup_id_x 1
.end_amdhsa_kernel
"""
```

```python
import sys, struct
sys.path.insert(0, 'work')
from asmgen import *

KN = 'adaLN_cond__ssm_conv_s4__glu_gated_bilinear__prompt_kernel'
def fhex(x): return '0x%08x' % struct.unpack('<I', struct.pack('<f', x))[0]
LOG2E = fhex(1.4426950408889634)
INV2PI = fhex(0.15915494309189535)

WS_EPOCH = 0
WS_CNT = 0x1000
CNT_S2 = WS_CNT
CNT_W = WS_CNT + 16 * 256
CNT_G = WS_CNT + 24 * 256
WS_ST1 = 0x8000
WS_MG = 0xC000
WS_GB = 0xD000
WS_X1T = 0x100000
WS_W1F = 0x300000
WS_WDF = 0x700000
WS_PART = 0x900000
WS_DUMP = 0x2000000
WS_TS = 0x3000000
AB_ROW = 1056
AB_CH = 53 * AB_ROW
L_TAB = 112000
L_MP = 118144
L_KC = 0; KC_COPY = 4160; KC_CH = 8 * KC_COPY
L_U = 66560; U_PL = 1280; U_CH = 4 * U_PL
L_XL = 76800; XL_PL = 1024; XL_CH = 4096
L_EX = 120064
L_XT = 0; L_HH = 57344; L_SP = 90112
LDS_BYTES = 153600
S_WAVE = 3
P_X, P_ARE, P_AIM, P_BRE, P_BIM, P_CRE, P_CIM, P_LDT = 16, 18, 20, 22, 24, 26, 28, 30
P_DSK, P_WG, P_WU, P_WD, P_C, P_WM, P_OUT, P_DBG, P_WS = 32, 36, 38, 40, 42, 44, 46, 48, 50
SRD_WS = 52; SRD_A = 56
S_TAG = 60
S_X8, S_I, S_D0, S_RT, S_S = 61, 62, 63, 64, 65
S_SA0, S_SA1, S_CA0, S_CA1, S_GA, S_DK, S_LDT = 66, 67, 68, 69, 70, 71, 72
S_T = 74
S_TS = 90
POLL_MAX = 20000

def build(debug=False, stamps=False, stop=99):
    a = Asm()
    nst = [0]
    def stamp(i):
        if not stamps: return
        lab = f'L_st{nst[0]}'; nst[0] += 1
        st = a.snap()
        a(f's_cmp_lg_u32 s{S_WAVE}, 0')
        a(f's_cbranch_scc1 {lab}')
        a(f's_memrealtime s[{S_TS}:{S_TS+1}]')
        a.force_wait(lg=0)
        a(f'v_writelane_b32 v255, s{S_TS}, {i}')
        a.label(lab)
        lg = []
        a.restore(st)
    def stamp_flush():
        if not stamps: return
        lab = f'L_st{nst[0]}'; nst[0] += 1
        a(f's_cmp_lg_u32 s{S_WAVE}, 0')
        a(f's_cbranch_scc1 {lab}')
        a(f's_lshl_b32 s{S_TS+2}, s2, 8')
        a(f's_add_u32 s{S_TS+2}, s{S_TS+2}, {WS_TS}')
        a(f'v_lshlrev_b32 v254, 2, v1')
        a(f'buffer_store_dword v255, v254, s[{SRD_WS}:{SRD_WS+3}], s{S_TS+2} offen')
        a.label(lab)

    def wave_reduce(regs):
        for mod in ('row_shr:1 row_mask:0xf', 'row_shr:2 row_mask:0xf', 'row_shr:4 row_mask:0xf', 'row_shr:8 row_mask:0xf',
                    'row_bcast:15 row_mask:0xa', 'row_bcast:31 row_mask:0xc'):
            for r in regs:
                a(f'v_add_f32_dpp v{r}, v{r}, v{r} {mod} bank_mask:0xf')
    def silu_bf16(dst, c, t):
        a(f'v_mul_f32 v{t}, {fhex(-1.4426950408889634)}, v{c}')
        a(f'v_exp_f32 v{t}, v{t}')
        a(f'v_add_f32 v{t}, 1.0, v{t}')
        a(f'v_rcp_f32 v{t}, v{t}')
        a(f'v_mul_f32 v{t}, v{c}, v{t}')
        a(f'v_cvt_pk_bf16_f32 v{t}, v{t}, v{t}')
        a(f'v_lshlrev_b32 v{dst}, 16, v{t}')
    npoll = [0]
    def poll(issue, check, sleep=1):
        n = npoll[0]; npoll[0] += 1
        a(f's_mov_b32 s{S_T+15}, 0')
        a.label(f'L_poll{n}')
        issue()
        a.force_wait(vm=0)
        check()
        a(f's_cbranch_vccz L_pdone{n}')
        if sleep: a(f's_sleep {sleep}')
        a(f's_add_u32 s{S_T+15}, s{S_T+15}, 1')
        a(f's_cmp_lt_u32 s{S_T+15}, {POLL_MAX}')
        a(f's_cbranch_scc1 L_poll{n}')
        a.label(f'L_pdone{n}')

    WSR = f's[{SRD_WS}:{SRD_WS+3}]'
    a('s_cmp_ge_u32 s2, 256')
    a('s_cbranch_scc1 L_end')
    a('s_load_dwordx16 s[16:31], s[0:1], 0')
    a('s_load_dwordx16 s[32:47], s[0:1], 64')
    a('s_load_dwordx4 s[48:51], s[0:1], 128')
    a('v_and_b32 v1, 63, v0')
    a('v_lshrrev_b32 v3, 6, v0')
    a('v_lshlrev_b32 v2, 4, v1')
    a(f'v_readfirstlane_b32 s{S_WAVE}, v3')
    a(f's_and_b32 s{S_X8}, s2, 7')
    a(f's_lshr_b32 s{S_I}, s2, 3')
    if stamps: a('v_mov_b32 v255, 0')
    a(f's_lshl_b32 s{S_T}, s2, 3')
    a(f's_add_u32 s{S_T}, s{S_T}, s{S_WAVE}')
    a(f's_mul_i32 s{S_T+1}, s{S_T}, 896')
    a.wait(lg=0)
    a(f's_load_dword s{S_TAG}, s[{P_WS}:{P_WS+1}], {WS_EPOCH}')
    a(f's_add_u32 s{SRD_A}, s{P_X}, s{S_T+1}')
    a(f's_addc_u32 s{SRD_A+1}, s{P_X+1}, 0')
    a(f's_mov_b32 s{SRD_A+2}, 896')
    a(f's_mov_b32 s{SRD_A+3}, 0x20000')
    a(f'buffer_load_dwordx4 v[4:7], v2, s[{SRD_A}:{SRD_A+3}], 0 offen')
    a(f's_mov_b32 s{SRD_WS}, s{P_WS}')
    a(f's_mov_b32 s{SRD_WS+1}, s{P_WS+1}')
    a(f's_mov_b32 s{SRD_WS+2}, 0x10000000')
    a(f's_mov_b32 s{SRD_WS+3}, 0x20000')
    stamp(0)
    a(f's_or_b32 s{S_T+2}, s2, s{S_WAVE}')
    a(f's_cmp_eq_u32 s{S_T+2}, 0')
    a(f's_cselect_b32 s{S_T+2}, {WS_CNT}, s{SRD_WS+2}')
    a(f'v_lshl_add_u32 v3, v1, 8, s{S_T+2}')
    a('v_mov_b32 v34, 0')
    a(f'buffer_store_dword v34, v3, {WSR}, 0 offen sc1')
    a('s_cmp_ge_u32 s2, 224')
    a('s_cbranch_scc1 L_spare')
    fork = a.snap()

    def stats_block(nyounger):
        for i in range(4):
            a(f'v_lshlrev_b32 v{36+2*i}, 16, v{4+i}')
            a(f'v_and_b32 v{37+2*i}, 0xffff0000, v{4+i}')
        a('v_add_f32 v34, v36, v37')
        a('v_add_f32 v35, v38, v39')
        a('v_add_f32 v44, v40, v41')
        a('v_add_f32 v45, v42, v43')
        a('v_add_f32 v34, v34, v35')
        a('v_add_f32 v44, v44, v45')
        a('v_add_f32 v34, v34, v44')
        wave_reduce([34])
        a(f'v_readlane_b32 s{S_T+3}, v34, 63')
        a('v_mov_b32 v35, 0')
        a(f'v_mov_b32 v44, {fhex(1/448)}')
        a(f'v_mul_f32 v34, s{S_T+3}, v44')
        a(f's_mov_b32 exec_hi, 0x00ffffff')
        for i in range(8):
            a(f'v_sub_f32 v{36+i}, v{36+i}, v34')
        for i in range(8):
            a(f'v_fmac_f32 v35, v{36+i}, v{36+i}')
        a(f's_mov_b32 exec_hi, -1')
        wave_reduce([35])
        a(f'v_readlane_b32 s{S_T+3}, v35, 63')
        a(f'v_mul_f32 v35, s{S_T+3}, v44')
        a('v_cvt_pk_bf16_f32 v35, v35, v35')
        a('v_lshlrev_b32 v35, 16, v35')
        a(f'v_add_f32 v35, {fhex(1e-5)}, v35')
        a('v_cvt_pk_bf16_f32 v35, v35, v35')
        a('v_lshlrev_b32 v35, 16, v35')
        a('v_sqrt_f32 v35, v35')
        a.wait(lg=0)
        a(f's_add_u32 s{S_TAG}, s{S_TAG}, 1')
        a('v_cvt_pk_bf16_f32 v36, v34, v35')
        a(f'v_mov_b32 v37, s{S_TAG}')
        a(f's_lshl_b32 s{S_T+3}, s{S_T}, 3')
        a(f's_add_u32 s{S_T+3}, s{S_T+3}, {WS_ST1}')
        a('v_mov_b32 v38, 0')
        a.force_wait(vm=nyounger)
        a('s_mov_b64 exec, 1')
        a(f'buffer_store_dwordx2 v[36:37], v38, {WSR}, s{S_T+3} offen sc1')
        a('s_mov_b64 exec, -1')

    a(f's_mul_i32 s{S_D0}, s{S_X8}, 28')
    a(f's_add_u32 s{S_T+4}, s{S_D0}, s{S_I}')
    a(f's_lshl_b32 s{S_D0}, s{S_T+4}, 1')
    a(f's_mul_i32 s{S_T+5}, s{S_I}, 9363')
    a(f's_lshr_b32 s{S_T+5}, s{S_T+5}, 16')
    a(f's_mul_i32 s{S_S}, s{S_T+5}, 7')
    a(f's_sub_u32 s{S_S}, s{S_I}, s{S_S}')
    a(f's_lshl_b32 s{S_RT}, s{S_X8}, 2')
    a(f's_add_u32 s{S_RT}, s{S_RT}, s{S_T+5}')
    a(f's_lshl_b32 s{S_T+5}, s{S_D0}, 9')
    a(f'v_lshl_add_u32 v3, v0, 1, s{S_T+5}')
    for i, p in enumerate((P_ARE, P_AIM, P_BRE, P_BIM, P_CRE, P_CIM)):
        a(f'global_load_short_d16_hi v{8+i}, v3, s[{p}:{p+1}]')
    a(f's_lshl_b32 s{S_T+5}, s{S_D0}, 1')
    a(f's_load_dword s{S_LDT}, s[{P_LDT}:{P_LDT+1}], s{S_T+5}')
    a(f's_load_dword s{S_DK}, s[{P_DSK}:{P_DSK+1}], s{S_T+5}')
    a('v_min_u32 v50, 447, v0')
    a('v_lshlrev_b32 v51, 1, v50')
    a(f'global_load_short_d16_hi v14, v51, s[{P_C}:{P_C+1}]')
    a(f'v_mul_u32_u24 v51, 5376, v50')
    a(f'v_add_u32 v51, s{S_T+5}, v51')
    for i in range(3):
        a(f'global_load_dword v{15+i}, v51, s[{P_WM}:{P_WM+1}] offset:{896*i}')
    GA = 100
    a('v_and_b32 v52, 255, v0')
    a('v_lshlrev_b32 v52, 3, v52')
    a('v_lshrrev_b32 v53, 8, v0')
    a(f'v_mul_u32_u24 v53, 3072, v53')
    a(f'v_add_u32 v53, {L_TAB}, v53')
    for t in range(15):
        r = GA + t
        a(f'v_add_u32 v{r}, {7 - t}, v52')
        a(f'v_cvt_f32_i32 v54, v{r}')
        a(f'v_cvt_pk_bf16_f32 v54, v54, v54')
        a(f'v_and_b32 v54, 0xffff, v54')
        a(f'v_subrev_u32 v54, {0x4300 - 128}, v54')
        a(f'v_min_i32 v55, 127, v{r}')
        a(f'v_max_i32 v54, v54, v55')
        if t > 7:
            a(f'v_cmp_gt_i32 vcc, 0, v{r}')
            a(f'v_mov_b32 v55, 767')
            a(f'v_cndmask_b32 v54, v54, v55, vcc')
        a(f'v_lshl_add_u32 v{r}, v54, 2, v53')
    stats_block(nyounger=10)
    stamp(1)
    a(f's_add_u32 s{S_T+6}, s{P_X}, s{S_T+5}')
    a(f's_addc_u32 s{S_T+7}, s{P_X+1}, 0')
    a('v_mul_u32_u24 v3, 3584, v0')
    for e in range(4):
        a(f'global_load_dword v{18+e}, v3, s[{S_T+6}:{S_T+7}] offset:{896*e}')
    a(f's_lshr_b32 s{S_T+8}, s{S_T+4}, 5')
    a(f's_bfe_u32 s{S_T+9}, s{S_T+4}, 0x30002')
    a(f's_and_b32 s{S_T+10}, s{S_T+4}, 3')
    a(f's_mul_i32 s{S_T+10}, s{S_T+10}, 7')
    a(f's_min_u32 s{S_T+11}, s{S_WAVE}, 6')
    a(f's_add_u32 s{S_T+10}, s{S_T+10}, s{S_T+11}')
    a(f's_lshl_b32 s{S_T+11}, s{S_T+8}, 8')
    a(f's_add_u32 s{S_T+11}, s{S_T+11}, s{S_T+9}')
    a(f's_mul_i32 s{S_T+11}, s{S_T+11}, 896')
    a(f's_lshl_b32 s{S_T+12}, s{S_T+10}, 5')
    a(f's_add_u32 s{S_T+11}, s{S_T+11}, s{S_T+12}')
    a('v_lshrrev_b32 v56, 5, v1')
    a('v_bfe_u32 v57, v1, 4, 1')
    a(f'v_mul_u32_u24 v56, {128*896}, v56')
    a(f'v_mul_u32_u24 v57, {32*896}, v57')
    a('v_and_b32 v58, 15, v1')
    a('v_lshlrev_b32 v58, 1, v58')
    a('v_add3_u32 v56, v56, v57, v58')
    a(f's_mov_b32 s{SRD_A}, s{P_WD}')
    a(f's_mov_b32 s{SRD_A+1}, s{P_WD+1}')
    a(f's_mov_b32 s{SRD_A+2}, {1792*896}')
    for j in range(8):
        a(f's_add_u32 s{S_T+12}, s{S_T+11}, {(64*(j>>2) + 8*(j&3)) * 896}')
        a(f'buffer_load_short_d16{"_hi" if j & 1 else ""} v{22+j}, v56, s[{SRD_A}:{SRD_A+3}], s{S_T+12} offen')
    a(f's_mul_i32 s{S_T+8}, s{S_T+8}, 28')
    a(f's_add_u32 s{S_T+8}, s{S_T+8}, s{S_T+10}')
    a(f's_lshl_b32 s{S_T+8}, s{S_T+8}, 3')
    a(f's_add_u32 s{S_T+8}, s{S_T+8}, s{S_T+9}')
    a(f's_lshl_b32 s{S_T+8}, s{S_T+8}, 10')
    a(f's_add_u32 s{S_T+8}, s{S_T+8}, {WS_WDF}')
    silu_bf16(50, 14, 51)
    a('v_cmp_gt_u32 vcc, 448, v0')
    a('v_cndmask_b32 v50, 0, v50, vcc')
    for i in range(3):
        a(f'v_lshlrev_b32 v{52+2*i}, 16, v{15+i}')
        a(f'v_and_b32 v{53+2*i}, 0xffff0000, v{15+i}')
    for i in range(6):
        a(f'v_mul_f32 v{52+i}, v{52+i}, v50')
    wave_reduce(list(range(52, 58)))
    a(f's_lshl_b32 s{S_T+9}, s{S_WAVE}, 5')
    a(f's_add_u32 s{S_T+9}, s{S_T+9}, {L_MP}')
    a(f'v_mov_b32 v50, s{S_T+9}')
    a('v_mov_b32 v58, 0')
    a('v_mov_b32 v59, 0')
    a('s_mov_b32 exec_lo, 0')
    a('s_mov_b32 exec_hi, 0x80000000')
    a('ds_write_b128 v50, v[52:55]')
    a('ds_write_b128 v50, v[56:59] offset:16')
    a('s_mov_b64 exec, -1')
    a(f's_lshl_b32 s{S_T+9}, s{S_LDT}, 16')
    a(f's_and_b32 s{S_T+10}, s{S_LDT}, 0xffff0000')
    a(f's_cmp_ge_u32 s{S_WAVE}, 4')
    a(f's_cselect_b32 s{S_T+9}, s{S_T+10}, s{S_T+9}')
    a(f'v_mov_b32 v60, {LOG2E}')
    a(f'v_mul_f32 v60, s{S_T+9}, v60')
    a('v_exp_f32 v60, v60')
    a('v_cvt_pk_bf16_f32 v60, v60, v60')
    a('v_lshlrev_b32 v60, 16, v60')
    a('v_mul_f32 v61, v60, v8')
    a('v_mul_f32 v62, v60, v9')
    a(f'v_mul_f32 v61, {LOG2E}, v61')
    a(f'v_mul_f32 v62, {INV2PI}, v62')
    a('v_mul_f32 v10, v60, v10')
    a('v_mul_f32 v11, v60, v11')
    W_, E1, E2, E4, E8, E16, E256, CA, CB0, CB1, CA2, T0, T1, T2 = 64, 66, 68, 70, 72, 74, 76, 78, 80, 82, 84, 86, 88, 90
    a(f'v_mul_f32 v{W_}, v12, v10')
    a(f'v_mul_f32 v{W_+1}, v12, v11')
    a(f'v_fma_f32 v{W_}, -v13, v11, v{W_}')
    a(f'v_fma_f32 v{W_+1}, v13, v10, v{W_+1}')
    for r, t in ((E1, 1.0), (E8, 8.0), (E256, 256.0)):
        a(f'v_mul_f32 v{T0}, {fhex(t)}, v61')
        a(f'v_mul_f32 v{T0+1}, {fhex(t)}, v62')
        a(f'v_exp_f32 v{T0}, v{T0}')
        a(f'v_fract_f32 v{T0+1}, v{T0+1}')
        a(f'v_cos_f32 v{r}, v{T0+1}')
        a(f'v_sin_f32 v{r+1}, v{T0+1}')
        a(f'v_mul_f32 v{r}, v{r}, v{T0}')
        a(f'v_mul_f32 v{r+1}, v{r+1}, v{T0}')
    def cmul_ops(d, x, y, t):
        return [f'v_pk_mul_f32 v[{t}:{t+1}], v[{x}:{x+1}], v[{y}:{y+1}] op_sel_hi:[0,1]',
                f'v_pk_fma_f32 v[{d}:{d+1}], v[{x}:{x+1}], v[{y}:{y+1}], v[{t}:{t+1}] op_sel:[1,1,0] op_sel_hi:[1,0,1] neg_lo:[1,0,0]']
    a('v_and_b32 v63, 255, v0')
    a('v_lshlrev_b32 v63, 2, v63')
    a(f's_cmp_ge_u32 s{S_WAVE}, 4')
    a(f's_cselect_b32 s{S_T+9}, {AB_CH}, 0')
    a(f'v_add_u32 v63, s{S_T+9}, v63')
    pk = [92, 93, 94, 95, 96, 97]; pki = [0]
    def put(row, r, isA):
        p = pk[pki[0] % len(pk)]; pki[0] += 1
        return [f'v_cvt_pk_bf16_f32 v{p}, v{r}, {"-" if isA else ""}v{r+1}', f'ds_write_b32 v63, v{p} offset:{row*AB_ROW}']
    for o in cmul_ops(E2, E1, E1, T0) + cmul_ops(E16, E8, E8, T1) + cmul_ops(E4, E2, E2, T0): a(o)
    chA, chB0, chB1 = [], [], []
    chA += put(0, W_, True)
    chA += cmul_ops(CA, W_, E1, T0) + put(1, CA, True)
    for p in range(2, 8):
        chA += cmul_ops(CA, CA, E1, T0) + put(p, CA, True)
    chA += cmul_ops(CA, W_, E256, T0) + put(8, CA, True)
    chA += cmul_ops(CA2, CA, E2, T0) + put(9, CA2, True)
    chA += cmul_ops(CA2, CA2, E2, T0) + put(10, CA2, True)
    chA += cmul_ops(CA2, CA2, E2, T0) + put(11, CA2, True)
    chA += cmul_ops(CA, CA, E256, T0) + put(12, CA, True)
    chA += cmul_ops(CA2, CA, E4, T0) + put(13, CA2, True)
    chA += cmul_ops(CA, CA, E256, T0) + put(14, CA, True)
    chA += cmul_ops(CA2, CA, E4, T0) + put(15, CA2, True)
    for r in range(16, 21):
        chA += cmul_ops(CA, CA, E256, T0) + put(r, CA, True)
    chB0 += ['v_mov_b32 v98, 0x3f80', f'ds_write_b32 v63, v98 offset:{21*AB_ROW}']
    chB0 += put(21 + 2, E16, False)
    chB0 += cmul_ops(CB0, E16, E16, T1) + put(21 + 4, CB0, False)
    for j in range(6, 32, 2):
        chB0 += cmul_ops(CB0, CB0, E16, T1) + put(21 + j, CB0, False)
    chB1 += put(21 + 1, E8, False)
    chB1 += cmul_ops(CB1, E8, E16, T2) + put(21 + 3, CB1, False)
    for j in range(5, 32, 2):
        chB1 += cmul_ops(CB1, CB1, E16, T2) + put(21 + j, CB1, False)
    def fixpk(ch, regs):
        out = []; k = 0
        for o in ch:
            if o.startswith('v_cvt_pk'):
                p = regs[k % len(regs)]; k += 1
                parts = o.split(' ', 2); o = f'{parts[0]} v{p}, {parts[2]}'; last = p
            elif o.startswith('ds_write') and 'v98' not in o:
                o = o.replace(o.split(', ')[1].split(' ')[0], f'v{last}')
            out.append(o)
        return out
    chA = fixpk(chA, [92, 93]); chB0 = fixpk(chB0, [94, 95]); chB1 = fixpk(chB1, [96, 97])
    n = max(len(chA), len(chB0), len(chB1))
    ia = ib = ic = 0
    while ia < len(chA) or ib < len(chB0) or ic < len(chB1):
        for _ in range(4):
            if ia < len(chA): a(chA[ia]); ia += 1
            if _ < 3:
                if ib < len(chB0): a(chB0[ib]); ib += 1
                if ic < len(chB1): a(chB1[ic]); ic += 1
    for j in range(4):
        a(f'v_or_b32 v{30+j}, v{22+2*j}, v{23+2*j}')
    a(f'buffer_store_dwordx4 v[30:33], v2, {WSR}, s{S_T+8} offen sc1')
    a(f's_bfe_u32 s{S_T+10}, s{S_WAVE}, 0x10001')
    a(f's_and_b32 s{S_T+11}, s{S_WAVE}, 1')
    a(f's_mul_i32 s{S_T+12}, s{S_T+10}, {16*AB_ROW}')
    a(f's_add_u32 s{S_T+12}, s{S_T+12}, s{S_T+9}')
    a(f's_mul_i32 s{S_T+13}, s{S_T+11}, {16*AB_ROW}')
    a(f's_add_u32 s{S_T+13}, s{S_T+13}, s{S_T+9}')
    a(f's_add_u32 s{S_T+13}, s{S_T+13}, {21*AB_ROW}')
    a('v_and_b32 v40, 15, v1')
    a('v_lshrrev_b32 v41, 4, v1')
    a(f'v_mul_u32_u24 v42, {AB_ROW}, v40')
    a('v_lshl_add_u32 v42, v41, 4, v42')
    a(f'v_add_u32 v43, s{S_T+13}, v42')
    a(f'v_add_u32 v42, s{S_T+12}, v42')
    a(f's_lshl_b32 s{S_T+11}, s{S_T+11}, 4')
    a(f'v_add_u32 v44, s{S_T+11}, v40')
    a(f's_cmp_ge_u32 s{S_WAVE}, 4')
    a(f's_cselect_b32 s{S_T+12}, 3072, 0')
    a(f's_add_u32 s{S_T+12}, s{S_T+12}, {L_TAB}')
    a('v_lshlrev_b32 v45, 3, v44')
    a('v_lshl_add_u32 v45, v41, 2, v45')
    a('v_lshlrev_b32 v46, 2, v44')
    a('v_add_u32 v46, 256, v46')
    a('v_cmp_eq_u32 vcc, 2, v41')
    a('v_cndmask_b32 v45, v45, v46, vcc')
    a('v_add_u32 v46, 2, v45')
    a('v_lshlrev_b32 v47, 1, v44')
    a('v_add_u32 v48, 384, v47')
    a('v_add_u32 v47, 448, v47')
    a('v_cmp_eq_u32 vcc, 3, v41')
    a('v_cndmask_b32 v45, v45, v48, vcc')
    a('v_cndmask_b32 v46, v46, v47, vcc')
    a(f'v_lshl_add_u32 v45, v45, 2, s{S_T+12}')
    a(f'v_lshl_add_u32 v46, v46, 2, s{S_T+12}')
    a('v_lshlrev_b32 v47, 7, v41')
    a('v_add_u32 v47, v47, v44')
    a('v_add_u32 v47, 512, v47')
    a(f'v_lshl_add_u32 v47, v47, 2, s{S_T+12}')
    a.barrier()
    stamp(2)
    KF = 128
    def kread(k):
        b = KF + (k % 8) * 8
        a(f'ds_read_b128 v[{b}:{b+3}], v42 offset:{k*64}')
        a(f'ds_read_b128 v[{b+4}:{b+7}], v43 offset:{k*64}')
    for k in range(6): kread(k)
    for k in range(16):
        b = KF + (k % 8) * 8
        a(f'v_mfma_f32_16x16x32_bf16 v[120:123], v[{b}:{b+3}], v[{b+4}:{b+7}], {"0" if k == 0 else "v[120:123]"}')
        if k + 6 < 16: kread(k + 6)
    a('v_lshlrev_b32 v50, 2, v1')
    a(f'v_add_u32 v50, {L_MP}, v50')
    a(f'ds_read_b32 v51, v50')
    a('v_mov_b32 v52, 0')
    a(f'v_mov_b32 v53, {L_TAB + 767*4}')
    a(f'ds_write_b32 v53, v52')
    a(f'ds_write_b32 v53, v52 offset:3072')
    st = a.snap()
    a(f's_cmp_lg_u32 s{S_T+10}, 0')
    a('s_cbranch_scc1 L_tab1')
    a('ds_write_b64 v45, v[120:121]')
    a('ds_write_b64 v46, v[122:123]')
    a('s_branch L_tab2')
    a.label('L_tab1')
    a.restore(st)
    a('s_mov_b64 exec, 0x1ffff')
    a('ds_write_b32 v47, v120')
    a('s_mov_b64 exec, 0xffff')
    for r in range(1, 4):
        a(f'ds_write_b32 v47, v{120+r} offset:{128*r}')
    a('s_mov_b64 exec, -1')
    a.label('L_tab2')
    a.force_wait(lg=0)
    a('v_add_f32_dpp v51, v51, v51 row_ror:8 row_mask:0xf bank_mask:0xf')
    a('v_mov_b32 v52, v51')
    a('v_permlane16_swap_b32 v51, v52')
    a('v_add_f32 v51, v51, v52')
    a('v_mov_b32 v52, v51')
    a('v_permlane32_swap_b32 v51, v52')
    a('v_add_f32 v51, v51, v52')
    a('v_cvt_pk_bf16_f32 v51, v51, v51')
    a('v_lshlrev_b32 v51, 16, v51')
    a('v_add_f32 v52, 1.0, v51')
    a('v_cvt_pk_bf16_f32 v52, v52, v52')
    a('v_lshlrev_b32 v52, 16, v52')
    a(f'v_readlane_b32 s{S_SA0}, v51, 0')
    a(f'v_readlane_b32 s{S_SA1}, v51, 1')
    a(f'v_readlane_b32 s{S_CA0}, v52, 2')
    a(f'v_readlane_b32 s{S_CA1}, v52, 3')
    a(f'v_readlane_b32 s{S_GA}, v51, 4')
    a(f'v_readlane_b32 s{S_T+9}, v51, 5')
    a(f's_lshl_b32 s{S_T+10}, s{S_DK}, 16')
    a(f's_and_b32 s{S_DK}, s{S_DK}, 0xffff0000')
    a(f's_cmp_ge_u32 s{S_WAVE}, 4')
    a(f's_cselect_b32 s{S_GA}, s{S_T+9}, s{S_GA}')
    a(f's_cselect_b32 s{S_DK}, s{S_DK}, s{S_T+10}')
    a.barrier()
    stamp(3)
    if debug:
        a('v_lshlrev_b32 v50, 4, v0')
        a(f'v_min_u32 v50, {6144-16}, v50')
        a(f'v_add_u32 v51, {L_TAB}, v50')
        a(f'ds_read_b128 v[52:55], v51')
        a(f's_mul_i32 s{S_T+9}, s{S_D0}, 3072')
        a(f's_add_u32 s{S_T+9}, s{S_T+9}, {WS_DUMP}')
        a(f'buffer_store_dwordx4 v[52:55], v50, {WSR}, s{S_T+9} offen')
    EV = 60
    for t in range(15):
        a(f'ds_read_b32 v{EV+t}, v{GA+t}')
    a('v_and_b32 v50, 255, v0')
    a('v_lshlrev_b32 v50, 4, v50')
    a(f's_cmp_ge_u32 s{S_WAVE}, 4')
    a(f's_cselect_b32 s{S_T+9}, {L_KC + KC_CH + 48}, {L_KC + 48}')
    a(f'v_add_u32 v50, s{S_T+9}, v50')
    a('v_mov_b32 v56, 0'); a('v_mov_b32 v57, 0'); a('v_mov_b32 v58, 0'); a('v_mov_b32 v59, 0')
    a('v_and_b32 v51, 3, v1')
    a('v_min_u32 v51, 2, v51')
    a('v_lshrrev_b32 v52, 2, v1')
    a(f'v_mul_u32_u24 v52, {KC_COPY}, v52')
    a('v_lshl_add_u32 v51, v51, 4, v52')
    a(f'ds_write_b128 v51, v[56:59] offset:{L_KC}')
    a('v_and_b32 v51, 15, v1')
    a('v_min_u32 v51, 14, v51')
    a('v_lshrrev_b32 v52, 4, v1')
    a(f'v_mul_u32_u24 v52, {U_PL}, v52')
    a('v_lshl_add_u32 v51, v51, 4, v52')
    a(f'v_add_u32 v51, {L_U}, v51')
    a(f'ds_write_b128 v51, v[56:59]')
    a(f'ds_write_b128 v51, v[56:59] offset:{U_CH}')
    D0_, D1_, X0_, X1_ = 76, 83, 90, 97
    for t in range(0, 6): a(f'v_cvt_pk_bf16_f32 v{76+t}, v{EV+2*t}, v{EV+2*t+1}')
    a(f'ds_write_b128 v50, v[76:79] offset:{7*KC_COPY}')
    a(f'ds_write_b128 v50, v[78:81] offset:{3*KC_COPY}')
    for t in range(1, 7): a(f'v_cvt_pk_bf16_f32 v{83+t}, v{EV+2*t}, v{EV+2*t+1}')
    a(f'ds_write_b128 v50, v[84:87] offset:{5*KC_COPY}')
    a(f'ds_write_b128 v50, v[86:89] offset:{1*KC_COPY}')
    for t in range(0, 6): a(f'v_cvt_pk_bf16_f32 v{90+t}, v{EV+2*t+1}, v{EV+2*t+2}')
    a(f'ds_write_b128 v50, v[90:93] offset:{6*KC_COPY}')
    a(f'ds_write_b128 v50, v[92:95] offset:{2*KC_COPY}')
    for t in range(1, 7): a(f'v_cvt_pk_bf16_f32 v{115+t}, v{EV+2*t+1}, v{EV+2*t+2}')
    a(f'ds_write_b128 v50, v[116:119] offset:{4*KC_COPY}')
    a(f'ds_write_b128 v50, v[118:121] offset:{0*KC_COPY}')
    stamp(4)
    a('v_lshrrev_b32 v40, 3, v0')
    a('v_bfe_u32 v41, v0, 1, 2')
    a('v_and_b32 v42, 1, v0')
    a('v_lshlrev_b32 v42, 3, v42')
    a('v_lshl_add_u32 v42, v40, 4, v42')
    a(f'v_mul_u32_u24 v43, {U_PL}, v41')
    a(f'v_add3_u32 v43, v43, v42, {0}')
    a(f'v_add_u32 v43, {L_U + 15*16}, v43')
    a(f'v_lshl_add_u32 v44, v41, 10, v42')
    a(f'v_add_u32 v44, {L_XL}, v44')
    a(f's_mov_b32 s{S_T+9}, 0x05040100')
    a(f's_mov_b32 s{S_T+10}, 0x07060302')
    a(f'v_perm_b32 v46, v19, v18, s{S_T+9}')
    a(f'v_perm_b32 v47, v21, v20, s{S_T+9}')
    a(f'v_perm_b32 v48, v19, v18, s{S_T+10}')
    a(f'v_perm_b32 v49, v21, v20, s{S_T+10}')
    a(f'ds_write_b64 v44, v[46:47]')
    a(f'ds_write_b64 v44, v[48:49] offset:{XL_CH}')
    for e in range(4):
        a(f'v_lshlrev_b32 v{60+e}, 16, v{18+e}')
        a(f'v_and_b32 v{64+e}, 0xffff0000, v{18+e}')
    a('v_lshlrev_b32 v45, 5, v0')
    a(f's_mov_b32 s{S_T+9}, {WS_ST1}')
    def issue():
        a(f'buffer_load_dwordx4 v[68:71], v45, {WSR}, s{S_T+9} offen sc1')
        a(f'buffer_load_dwordx4 v[72:75], v45, {WSR}, s{S_T+9} offen offset:16 sc1')
    def check():
        a(f'v_xor_b32 v76, s{S_TAG}, v69')
        a(f'v_xor_b32 v77, s{S_TAG}, v71')
        a(f'v_xor_b32 v78, s{S_TAG}, v73')
        a(f'v_xor_b32 v79, s{S_TAG}, v75')
        a('v_or3_b32 v76, v76, v77, v78')
        a('v_or_b32 v76, v76, v79')
        a('v_cmp_ne_u32 vcc, 0, v76')
    poll(issue, check)
    stamp(5)
    for e in range(4):
        g = 68 + 2 * e
        a(f'v_and_b32 v{76+e}, 0xffff0000, v{g}')
        a(f'v_lshlrev_b32 v{g}, 16, v{g}')
        a(f'v_rcp_f32 v{76+e}, v{76+e}')
    for e in range(4):
        g = 68 + 2 * e
        a(f'v_sub_f32 v{60+e}, v{60+e}, v{g}')
        a(f'v_sub_f32 v{64+e}, v{64+e}, v{g}')
    a(f'v_mov_b32 v80, s{S_SA0}')
    a(f'v_mov_b32 v81, s{S_SA1}')
    for e in range(4):
        a(f'v_mul_f32 v{60+e}, v{60+e}, v{76+e}')
        a(f'v_mul_f32 v{64+e}, v{64+e}, v{76+e}')
    for e in range(4):
        a(f'v_fma_f32 v{60+e}, v{60+e}, s{S_CA0}, v80')
        a(f'v_fma_f32 v{64+e}, v{64+e}, s{S_CA1}, v81')
    a('v_cvt_pk_bf16_f32 v46, v60, v61')
    a('v_cvt_pk_bf16_f32 v47, v62, v63')
    a('v_cvt_pk_bf16_f32 v48, v64, v65')
    a('v_cvt_pk_bf16_f32 v49, v66, v67')
    a(f'ds_write_b64 v43, v[46:47]')
    a(f'ds_write_b64 v43, v[48:49] offset:{U_CH}')
    a(f's_lshr_b32 s{S_T+9}, s{S_WAVE}, 2')
    a(f's_bfe_u32 s{S_T+10}, s{S_WAVE}, 0x10001')
    a(f's_and_b32 s{S_T+11}, s{S_WAVE}, 1')
    a('v_and_b32 v40, 15, v1')
    a('v_lshrrev_b32 v41, 4, v1')
    a(f's_mul_i32 s{S_T+12}, s{S_T+9}, {U_CH}')
    a(f's_lshl_b32 s{S_T+13}, s{S_T+10}, 4')
    a(f's_sub_u32 s{S_T+12}, s{S_T+12}, s{S_T+13}')
    a(f's_add_u32 s{S_T+12}, s{S_T+12}, {L_U + 16}')
    a(f'v_mul_u32_u24 v42, {U_PL}, v41')
    a('v_lshl_add_u32 v42, v40, 4, v42')
    a(f'v_add_u32 v43, s{S_T+12}, v42')
    a(f's_mul_i32 s{S_T+12}, s{S_T+9}, {KC_CH}')
    a(f's_mul_i32 s{S_T+13}, s{S_T+11}, {4*KC_COPY}')
    a(f's_add_u32 s{S_T+12}, s{S_T+12}, s{S_T+13}')
    a(f's_lshl_b32 s{S_T+13}, s{S_T+10}, 6')
    a(f's_add_u32 s{S_T+12}, s{S_T+12}, s{S_T+13}')
    a(f's_add_u32 s{S_T+12}, s{S_T+12}, {L_KC + 48}')
    a('v_and_b32 v44, 3, v40')
    a(f'v_mul_u32_u24 v44, {KC_COPY}, v44')
    a('v_lshrrev_b32 v45, 2, v40')
    a('v_sub_u32 v45, v45, v41')
    a('v_lshl_add_u32 v44, v45, 4, v44')
    a(f'v_add_u32 v44, s{S_T+12}, v44')
    a.barrier()
    stamp(6)
    CF = 128; CACC = 200
    def cread(it):
        b = CF + (it & 1) * 32
        order = [('F', 0), ('G', 0), ('G', 1), ('G', 2), ('G', 3), ('F', 1), ('F', 2), ('F', 3)]
        out = []
        for k, i in order:
            if k == 'F':
                out.append(f'ds_read_b128 v[{b+4*i}:{b+4*i+3}], v44 offset:{(8*it + 64*i)*16}')
            else:
                out.append(f'ds_read_b128 v[{b+16+4*i}:{b+16+4*i+3}], v43 offset:{(16*i + 14 - 2*it)*16}')
        return out
    for o in cread(0): a(o)
    for it in range(8):
        b = CF + (it & 1) * 32
        nxt = cread(it + 1) if it < 7 else []
        k = 0
        for e in range(4):
            for i in range(e, 4):
                c = '0' if (it == 0 and e == 0) else f'v[{CACC+4*i}:{CACC+4*i+3}]'
                a(f'v_mfma_f32_16x16x32_bf16 v[{CACC+4*i}:{CACC+4*i+3}], v[{b+4*e}:{b+4*e+3}], v[{b+16+4*(i-e)}:{b+16+4*(i-e)+3}], {c}')
                if k < len(nxt): a(nxt[k]); k += 1
    stamp(7)
    a(f's_lshl_b32 s{S_T+12}, s{S_T+9}, 14')
    a(f's_add_u32 s{S_T+12}, s{S_T+12}, {L_EX}')
    a(f's_and_b32 s{S_T+13}, s{S_WAVE}, 3')
    a(f's_lshl_b32 s{S_T+14}, s{S_T+13}, 10')
    a(f's_add_u32 s{S_T+14}, s{S_T+14}, s{S_T+12}')
    a(f'v_add_u32 v45, s{S_T+14}, v2')
    a(f's_lshl_b32 s{S_T+14}, s{S_T+13}, 12')
    a(f's_add_u32 s{S_T+14}, s{S_T+14}, s{S_T+12}')
    a(f'v_add_u32 v46, s{S_T+14}, v2')
    a(f's_mul_i32 s{S_T+12}, s{S_T+9}, {U_CH}')
    a(f's_lshl_b32 s{S_T+14}, s{S_T+13}, 8')
    a(f's_add_u32 s{S_T+12}, s{S_T+12}, s{S_T+14}')
    a(f's_add_u32 s{S_T+12}, s{S_T+12}, {L_U + 15*16}')
    a(f'v_add_u32 v47, s{S_T+12}, v42')
    a(f'ds_read_b128 v[60:63], v47')
    a(f's_lshl_b32 s{S_T+12}, s{S_T+9}, 12')
    a(f's_add_u32 s{S_T+12}, s{S_T+12}, s{S_T+14}')
    a(f's_add_u32 s{S_T+12}, s{S_T+12}, {L_XL}')
    a('v_lshlrev_b32 v48, 4, v40')
    a('v_lshl_add_u32 v48, v41, 10, v48')
    a(f'v_add_u32 v48, s{S_T+12}, v48')
    a(f'ds_read_b128 v[64:67], v48')
    for i in range(4):
        a(f'ds_write_b128 v45, v[{CACC+4*i}:{CACC+4*i+3}] offset:{4096*i}')
    for i in range(4):
        a(f'v_lshlrev_b32 v{84+2*i}, 16, v{60+i}')
        a(f'v_and_b32 v{85+2*i}, 0xffff0000, v{60+i}')
        a(f'v_lshlrev_b32 v{92+2*i}, 16, v{64+i}')
        a(f'v_and_b32 v{93+2*i}, 0xffff0000, v{64+i}')
    a(f's_add_u32 s{S_T+12}, s{S_D0}, s{S_T+9}')
    a(f's_lshl_b32 s{S_T+12}, s{S_T+12}, 12')
    a(f's_lshl_b32 s{S_T+14}, s{S_T+13}, 10')
    a(f's_add_u32 s{S_T+12}, s{S_T+12}, s{S_T+14}')
    a(f's_add_u32 s{S_T+12}, s{S_T+12}, {WS_X1T}')
    a('v_lshlrev_b32 v49, 6, v40')
    a('v_lshl_add_u32 v49, v41, 4, v49')
    a.barrier()
    for i in range(4):
        a(f'ds_read_b128 v[{68+4*i}:{71+4*i}], v46 offset:{1024*i}')
    for r in range(4):
        a(f'v_fma_f32 v{84+r}, v{84+r}, s{S_DK}, v{68+r}')
    for r in range(4):
        a(f'v_fma_f32 v{88+r}, v{88+r}, s{S_DK}, v{72+r}')
    for r in range(4):
        a(f'v_add_f32 v{84+r}, v{84+r}, v{76+r}')
    for r in range(4):
        a(f'v_add_f32 v{88+r}, v{88+r}, v{80+r}')
    for r in range(8):
        a(f'v_fma_f32 v{92+r}, v{84+r}, s{S_GA}, v{92+r}')
    for i in range(4):
        a(f'v_cvt_pk_bf16_f32 v{60+i}, v{92+2*i}, v{93+2*i}')
    a(f'buffer_store_dwordx4 v[60:63], v49, {WSR}, s{S_T+12} offen sc1')
    a.force_wait(vm=0)
    a.barrier()
    stamp(8)
    st = a.snap()
    a(f's_cmp_lg_u32 s{S_WAVE}, 0')
    a('s_cbranch_scc1 L_s2a')
    a('v_mov_b32 v40, 1')
    a(f's_and_b32 s{S_T+9}, s2, 15')
    a(f's_lshl_b32 s{S_T+9}, s{S_T+9}, 8')
    a(f's_add_u32 s{S_T+9}, s{S_T+9}, {CNT_S2}')
    a('v_mov_b32 v41, 0')
    a('s_mov_b64 exec, 1')
    a(f'buffer_atomic_add v40, v41, {WSR}, s{S_T+9} offen sc1')
    a(f's_lshl_b32 s{S_T+9}, s{S_X8}, 8')
    a(f's_add_u32 s{S_T+9}, s{S_T+9}, {CNT_W}')
    poll(lambda: a(f'buffer_load_dword v42, v41, {WSR}, s{S_T+9} offen sc1'),
         lambda: a('v_cmp_ne_u32 vcc, 28, v42'))
    a('s_mov_b64 exec, -1')
    a.label('L_s2a')
    a.restore(st)
    a('s_barrier')
    stamp(9)
    if stop <= 2:
        stamp_flush()
        a('s_endpgm')
    RING0 = 112; NSLOT = 35
    def slot(i): return RING0 + 4 * i
    a(f's_lshl_b32 s{S_T}, s{S_S}, 3')
    a(f's_add_u32 s{S_T}, s{S_T}, s{S_WAVE}')
    a(f's_mul_i32 s{S_T}, s{S_T}, {29*2048}')
    a(f's_add_u32 s{S_T}, s{S_T}, {WS_W1F}')
    w1_issued = [0]
    def issue_w1():
        n = w1_issued[0]
        if n >= 58: return False
        r = slot(n % NSLOT)
        if n % 4 == 0 and n > 0:
            a(f's_add_u32 s{S_T}, s{S_T}, 4096')
        a(f'buffer_load_dwordx4 v[{r}:{r+3}], v2, {WSR}, s{S_T} offen offset:{(n % 4)*1024} sc1')
        w1_issued[0] += 1
        return True
    for _ in range(NSLOT): issue_w1()
    TB = S_T + 1
    PB = S_T + 5
    for i in range(4):
        a(f's_lshl_b32 s{S_T+9}, s{S_S}, 2')
        a(f's_add_u32 s{S_T+9}, s{S_T+9}, {4 + 8*i}')
        a(f's_add_u32 s{S_T+9}, s{S_T+9}, s{S_WAVE}')
        a(f's_sub_u32 s{S_T+10}, s{S_T+9}, 28')
        a(f's_cmp_ge_u32 s{S_T+9}, 28')
        a(f's_cselect_b32 s{S_T+9}, s{S_T+10}, s{S_T+9}')
        a(f's_sub_u32 s{S_T+10}, s{S_T+9}, 28')
        a(f's_cmp_ge_u32 s{S_T+9}, 28')
        a(f's_cselect_b32 s{S_T+9}, s{S_T+10}, s{S_T+9}')
        a(f's_mul_i32 s{S_T+10}, s{S_S}, 28')
        a(f's_add_u32 s{S_T+10}, s{S_T+10}, s{S_T+9}')
        a(f's_lshl_b32 s{S_T+10}, s{S_T+10}, 13')
        a(f's_add_u32 s{TB+i}, s{S_T+10}, {WS_WDF}')
        a(f's_mul_i32 s{S_T+10}, s{S_RT}, 7')
        a(f's_lshr_b32 s{S_T+11}, s{S_T+9}, 2')
        a(f's_add_u32 s{S_T+10}, s{S_T+10}, s{S_T+11}')
        a(f's_mul_i32 s{S_T+10}, s{S_T+10}, 7')
        a(f's_add_u32 s{S_T+10}, s{S_T+10}, s{S_S}')
        a(f's_lshl_b32 s{S_T+10}, s{S_T+10}, 2')
        a(f's_and_b32 s{S_T+11}, s{S_T+9}, 3')
        a(f's_add_u32 s{S_T+10}, s{S_T+10}, s{S_T+11}')
        a(f's_lshl_b32 s{S_T+10}, s{S_T+10}, 11')
        a(f's_add_u32 s{PB+i}, s{S_T+10}, {WS_PART}')
    a('v_lshrrev_b32 v4, 3, v1')
    a('v_and_b32 v5, 7, v1')
    a('v_and_b32 v6, 2, v4')
    a('v_lshlrev_b32 v6, 1, v6')
    a('v_xor_b32 v5, v5, v6')
    a('v_lshlrev_b32 v5, 4, v5')
    a('v_lshl_add_u32 v4, v4, 12, v5')
    a('v_bfe_u32 v5, v1, 2, 2')
    a('v_lshrrev_b32 v6, 5, v1')
    a('v_lshl_add_u32 v6, v6, 3, v5')
    a('v_lshlrev_b32 v6, 7, v6')
    a('v_bfe_u32 v7, v1, 4, 1')
    a('v_and_b32 v5, 2, v5')
    a('v_xor_b32 v7, v7, v5')
    a('v_lshl_add_u32 v6, v7, 5, v6')
    a('v_and_b32 v7, 3, v1')
    a('v_lshl_add_u32 v6, v7, 3, v6')
    a('v_xor_b32 v7, 64, v6')
    a('v_mov_b32 v8, 0'); a('v_mov_b32 v9, 0'); a('v_mov_b32 v10, 0'); a('v_mov_b32 v11, 0')
    a('v_mov_b32 v12, 0x3f803f80')
    st = a.snap()
    a(f's_cmp_lg_u32 s{S_WAVE}, 0')
    a('s_cbranch_scc1 L_s2b')
    a('v_lshlrev_b32 v13, 8, v1')
    a(f's_mov_b32 s{S_T+9}, {CNT_S2}')
    a('s_mov_b64 exec, 0xffff')
    poll(lambda: a(f'buffer_load_dword v14, v13, {WSR}, s{S_T+9} offen sc1'),
         lambda: a('v_cmp_ne_u32 vcc, 14, v14'))
    a('s_mov_b64 exec, -1')
    a('s_cmp_lg_u32 s2, 0')
    a('s_cbranch_scc1 L_s2b')
    a(f'v_mov_b32 v14, s{S_TAG}')
    a('v_mov_b32 v13, 0')
    a('s_mov_b64 exec, 1')
    a(f'buffer_store_dword v14, v13, {WSR}, 0 offen sc1')
    a.force_wait(vm=0)
    a('s_mov_b64 exec, -1')
    a.label('L_s2b')
    a.restore(st)
    a('s_barrier')
    stamp(10)
    a(f's_lshl_b32 s{S_T+9}, s{S_WAVE}, 15')
    a(f's_lshl_b32 s{S_T+10}, s{S_RT}, 7')
    a(f's_add_u32 s{S_T+9}, s{S_T+9}, s{S_T+10}')
    a(f's_add_u32 s{S_T+9}, s{S_T+9}, {WS_X1T}')
    a(f's_lshl_b32 s{S_T+10}, s{S_WAVE}, 10')
    for i in range(7):
        a(f's_mov_b32 m0, s{S_T+10}')
        a(f'buffer_load_dwordx4 v4, {WSR}, s{S_T+9} offen sc1 lds')
        if i < 6:
            a(f's_add_u32 s{S_T+9}, s{S_T+9}, {8*32768}')
            a(f's_add_u32 s{S_T+10}, s{S_T+10}, 8192')
    a.force_wait(vm=0)
    a('s_barrier')
    stamp(11)
    ACC = 32; XF = 96
    def xread(k):
        b = XF + (k & 1) * 8
        return [f'ds_read_b64_tr_b16 v[{b+4*lt+2*h}:{b+4*lt+2*h+1}], v{6+lt} offset:{L_XT + k*2048 + h*512}' for lt in range(2) for h in range(2)]
    wd_list = [(i, kap) for i in range(4) for kap in range(8)]
    wd_slot = {}
    wd_next = [0]
    free_wd = []
    def issue_wd():
        if wd_next[0] >= len(wd_list) or not free_wd: return False
        i, kap = wd_list[wd_next[0]]
        r = free_wd.pop(0)
        wd_slot[(i, kap)] = r
        if kap == 4:
            a(f's_add_u32 s{TB+i}, s{TB+i}, 4096')
        a(f'buffer_load_dwordx4 v[{r}:{r+3}], v2, {WSR}, s{TB+i} offen offset:{(kap % 4)*1024} sc1')
        wd_next[0] += 1
        return True
    for o in xread(0): a(o)
    for k in range(28):
        b = XF + (k & 1) * 8
        nx = xread(k + 1) if k < 27 else []
        for m in range(2):
            r = slot((2 * k + m) % NSLOT)
            for lt in range(2):
                acc = ACC + 32 * m + 16 * lt
                c = '0' if k == 0 else f'v[{acc}:{acc+15}]'
                a(f'v_mfma_f32_32x32x16_bf16 v[{acc}:{acc+15}], v[{r}:{r+3}], v[{b+4*lt}:{b+4*lt+3}], {c}')
                if nx: a(nx.pop(0))
            if not issue_w1():
                if r >= 176:
                    free_wd.append(r)
                issue_wd()
        st = a.snap()
        a(f's_cmp_lg_u32 s{S_WAVE}, {k & 7}')
        a(f's_cbranch_scc1 L_sk{k}')
        for j in range(4):
            for lt in range(2):
                a(f'v_dot2c_f32_bf16 v{8+lt}, v{b+4*lt+j}, v12')
                a(f'v_dot2c_f32_bf16 v{10+lt}, v{b+4*lt+j}, v{b+4*lt+j}')
        a.label(f'L_sk{k}')
        a.restore(st)
    stamp(12)
    a('s_nop 3')
    a('v_permlane32_swap_b32 v8, v9')
    a('v_permlane32_swap_b32 v10, v11')
    a('v_add_f32 v8, v8, v9')
    a('v_add_f32 v9, v10, v11')
    a(f's_lshl_b32 s{S_T+9}, s{S_WAVE}, 9')
    a(f's_add_u32 s{S_T+9}, s{S_T+9}, {L_SP}')
    a(f'v_lshlrev_b32 v13, 3, v1')
    a(f'v_add_u32 v14, s{S_T+9}, v13')
    a('ds_write_b64 v14, v[8:9]')
    a(f'v_add_u32 v13, {L_SP}, v13')
    a.barrier()
    for w in range(8):
        a(f'ds_read_b64 v[{96+2*w}:{97+2*w}], v13 offset:{512*w}')
    a('v_pk_add_f32 v[96:97], v[96:97], v[98:99]')
    a('v_pk_add_f32 v[100:101], v[100:101], v[102:103]')
    a('v_pk_add_f32 v[104:105], v[104:105], v[106:107]')
    a('v_pk_add_f32 v[108:109], v[108:109], v[110:111]')
    a('v_pk_add_f32 v[96:97], v[96:97], v[100:101]')
    a('v_pk_add_f32 v[104:105], v[104:105], v[108:109]')
    a('v_pk_add_f32 v[96:97], v[96:97], v[104:105]')
    a(f'v_mul_f32 v96, {fhex(1/448)}, v96')
    a(f'v_mul_f32 v97, {fhex(1/448)}, v97')
    a('v_fma_f32 v97, -v96, v96, v97')
    a('v_max_f32 v97, 0, v97')
    a('v_cvt_pk_bf16_f32 v97, v97, v97')
    a('v_lshlrev_b32 v97, 16, v97')
    a(f'v_add_f32 v97, {fhex(1e-5)}, v97')
    a('v_cvt_pk_bf16_f32 v97, v97, v97')
    a('v_lshlrev_b32 v97, 16, v97')
    a('v_sqrt_f32 v97, v97')
    a('v_cvt_pk_bf16_f32 v98, -v96, -v96')
    a('v_cvt_pk_bf16_f32 v99, v97, v97')
    a('v_and_b32 v8, 0xffff0000, v99')
    a('v_mul_f32 v8, v8, v8')
    a('v_rcp_f32 v8, v8')
    a('v_cmp_gt_u32 vcc, 32, v1')
    a('v_cndmask_b32 v100, 0, v98, vcc')
    a('v_cndmask_b32 v101, 0, v99, vcc')
    a('v_cndmask_b32 v102, 0, v98, vcc')
    a('v_cndmask_b32 v103, 0, v99, vcc')
    a('v_cndmask_b32 v104, v98, 0, vcc')
    a('v_cndmask_b32 v105, v99, 0, vcc')
    a('v_cndmask_b32 v106, v98, 0, vcc')
    a('v_cndmask_b32 v107, v99, 0, vcc')
    a('v_mov_b32 v9, v8')
    for m in range(2):
        r = slot((56 + m) % NSLOT)
        for lt in range(2):
            acc = ACC + 32 * m + 16 * lt
            a(f'v_mfma_f32_32x32x16_bf16 v[{acc}:{acc+15}], v[{r}:{r+3}], v[{100+4*lt}:{103+4*lt}], v[{acc}:{acc+15}]')
        free_wd.append(r)
    a('v_permlane32_swap_b32 v8, v9')
    while issue_wd(): pass
    a('v_bfe_u32 v13, v1, 4, 1')
    a('v_lshlrev_b32 v13, 10, v13')
    a('v_lshrrev_b32 v14, 5, v1')
    a('v_lshl_add_u32 v13, v14, 8, v13')
    a('v_and_b32 v14, 15, v1')
    a('v_lshl_add_u32 v13, v14, 4, v13')
    a(f's_lshl_b32 s{S_T+9}, s{S_WAVE}, 12')
    a(f's_add_u32 s{S_T+9}, s{S_T+9}, {L_HH}')
    a(f'v_add_u32 v13, s{S_T+9}, v13')
    for lt in range(2):
        g = ACC + 16 * lt; u = ACC + 32 + 16 * lt
        for i in range(0, 16, 2):
            a(f'v_pk_mul_f32 v[{g+i}:{g+i+1}], v[{g+i}:{g+i+1}], v[{u+i}:{u+i+1}]')
        for i in range(0, 16, 2):
            a(f'v_pk_mul_f32 v[{g+i}:{g+i+1}], v[{g+i}:{g+i+1}], v[8:9] op_sel:[0,{lt}] op_sel_hi:[1,{lt}]')
        for i in range(8):
            a(f'v_cvt_pk_bf16_f32 v{u+i}, v{g+2*i}, v{g+2*i+1}')
        a(f'ds_write_b128 v13, v[{u}:{u+3}] offset:{2048*lt}')
        a(f'ds_write_b128 v13, v[{u+4}:{u+7}] offset:{2048*lt + 512}')
    a(f'v_add_u32 v14, {L_HH}, v2')
    a.barrier()
    stamp(13)
    HF = 32
    for kap in range(8):
        for u in range(4):
            r = HF + (kap * 4 + u) * 4
            a(f'ds_read_b128 v[{r}:{r+3}], v14 offset:{(kap*4+u)*1024}')
    A2 = [160, 16]
    for i in range(4):
        if i == 3:
            a.force_wait(vm=0) if False else None
            stg = a.snap()
        acc = A2[i & 1]
        if i == 3:
            pass
        def tile(i, acc):
            for kap in range(8):
                r = wd_slot[(i, kap)]
                for u in range(4):
                    h = HF + (kap * 4 + u) * 4
                    c = '0' if kap == 0 else f'v[{acc+4*u}:{acc+4*u+3}]'
                    a(f'v_mfma_f32_16x16x32_bf16 v[{acc+4*u}:{acc+4*u+3}], v[{r}:{r+3}], v[{h}:{h+3}], {c}')
                free_wd.append(r)
                issue_wd()
                if kap == 2 and i > 0:
                    publish(i - 1)
        def publish(i):
            acc = A2[i & 1]
            for k in range(8):
                a(f'v_cvt_pk_bf16_f32 v{8+k}, v{acc+2*k}, v{acc+2*k+1}')
            a(f'buffer_store_dwordx4 v[8:11], v2, {WSR}, s{PB+i} offen sc1')
            a(f'buffer_store_dwordx4 v[12:15], v2, {WSR}, s{PB+i} offen offset:1024 sc1')
        if i < 3:
            tile(i, acc)
        else:
            publish(2)
            a.force_wait(vm=0)
            a('s_barrier')
            stamp(14)
            a(f's_cmp_ge_u32 s{S_WAVE}, 4')
            a('s_cbranch_scc1 L_end')
            st = a.snap()
            a(f's_lshl_b32 s{S_T+9}, s{S_RT}, 8')
            a(f's_add_u32 s{S_T+9}, s{S_T+9}, {CNT_G}')
            a('v_mov_b32 v9, 0')
            a(f's_cmp_lg_u32 s{S_WAVE}, 0')
            a('s_cbranch_scc1 L_g1')
            a('v_mov_b32 v8, 1')
            a('s_mov_b64 exec, 1')
            a(f'buffer_atomic_add v8, v9, {WSR}, s{S_T+9} offen sc1')
            a('s_mov_b64 exec, -1')
            a.label('L_g1')
            for kap in range(8):
                r = wd_slot[(3, kap)]
                for u in range(4):
                    h = HF + (kap * 4 + u) * 4
                    c = '0' if kap == 0 else f'v[{acc+4*u}:{acc+4*u+3}]'
                    a(f'v_mfma_f32_16x16x32_bf16 v[{acc+4*u}:{acc+4*u+3}], v[{r}:{r+3}], v[{h}:{h+3}], {c}')
    acc = A2[1]
    a('v_bfe_u32 v4, v1, 2, 2')
    a('v_lshrrev_b32 v5, 4, v1')
    a('v_lshl_add_u32 v6, v5, 2, v4')
    a('v_lshlrev_b32 v6, 7, v6')
    a('v_and_b32 v4, 2, v4')
    a('v_lshl_add_u32 v6, v4, 5, v6')
    a('v_and_b32 v4, 3, v1')
    a('v_lshl_add_u32 v6, v4, 3, v6')
    a(f's_lshl_b32 s{S_T+10}, s{S_S}, 2')
    a(f's_add_u32 s{S_T+10}, s{S_T+10}, s{S_WAVE}')
    a(f's_lshl_b32 s{S_T+11}, s{S_T+10}, 11')
    a(f'v_add_u32 v6, s{S_T+11}, v6')
    a('v_xor_b32 v7, 64, v6')
    a(f'ds_read_b64_tr_b16 v[32:33], v6 offset:{L_XT}')
    a(f'ds_read_b64_tr_b16 v[34:35], v6 offset:{L_XT+32}')
    a(f'ds_read_b64_tr_b16 v[36:37], v7 offset:{L_XT}')
    a(f'ds_read_b64_tr_b16 v[38:39], v7 offset:{L_XT+32}')
    a(f's_lshl_b32 s{S_T+11}, s{S_T+10}, 6')
    a(f's_add_u32 s{S_T+11}, s{S_T+11}, {WS_GB}')
    a('v_lshlrev_b32 v10, 4, v5')
    def issue():
        a(f'buffer_load_dwordx4 v[40:43], v10, {WSR}, s{S_T+11} offen sc1')
        a(f'buffer_load_dword v44, v9, {WSR}, s{S_T+9} offen sc1')
    def check():
        a(f'v_xor_b32 v45, s{S_TAG}, v41')
        a(f'v_xor_b32 v46, s{S_TAG}, v43')
        a(f'v_xor_b32 v47, 7, v44')
        a('v_or3_b32 v45, v45, v46, v47')
        a('v_cmp_ne_u32 vcc, 0, v45')
    poll(issue, check)
    stamp(15)
    a(f's_mul_i32 s{S_T+12}, s{S_RT}, 7')
    a(f's_add_u32 s{S_T+12}, s{S_T+12}, s{S_S}')
    a(f's_mul_i32 s{S_T+12}, s{S_T+12}, {7*4*2048}')
    a(f's_lshl_b32 s{S_T+13}, s{S_WAVE}, 11')
    a(f's_add_u32 s{S_T+12}, s{S_T+12}, s{S_T+13}')
    a(f's_add_u32 s{S_T+12}, s{S_T+12}, {WS_PART}')
    for j in range(6):
        a(f's_add_u32 s{S_T+13}, s{S_S}, {j+1}')
        a(f's_sub_u32 s{S_T+14}, s{S_T+13}, 7')
        a(f's_cmp_ge_u32 s{S_T+13}, 7')
        a(f's_cselect_b32 s{S_T+13}, s{S_T+14}, s{S_T+13}')
        a(f's_lshl_b32 s{S_T+13}, s{S_T+13}, 13')
        a(f's_add_u32 s{S_T+13}, s{S_T+13}, s{S_T+12}')
        a(f'buffer_load_dwordx4 v[{48+8*j}:{51+8*j}], v2, {WSR}, s{S_T+13} offen sc1')
        a(f'buffer_load_dwordx4 v[{52+8*j}:{55+8*j}], v2, {WSR}, s{S_T+13} offen offset:1024 sc1')
    a('v_lshlrev_b32 v96, 16, v40'); a('v_and_b32 v97, 0xffff0000, v40')
    a('v_lshlrev_b32 v98, 16, v42'); a('v_and_b32 v99, 0xffff0000, v42')
    for k in range(8):
        a(f'v_lshlrev_b32 v{100+2*k}, 16, v{32+k}')
        a(f'v_and_b32 v{101+2*k}, 0xffff0000, v{32+k}')
    a('v_and_b32 v4, 15, v1')
    a('v_mul_u32_u24 v4, 896, v4')
    a('v_lshl_add_u32 v4, v5, 3, v4')
    a(f's_mul_i32 s{S_T+13}, s{S_RT}, {64*896}')
    a(f's_lshl_b32 s{S_T+14}, s{S_T+10}, 5')
    a(f's_add_u32 s{S_T+13}, s{S_T+13}, s{S_T+14}')
    a(f's_mov_b32 s{SRD_A}, s{P_OUT}')
    a(f's_mov_b32 s{SRD_A+1}, s{P_OUT+1}')
    a(f's_mov_b32 s{SRD_A+2}, {2048*896}')
    for j in range(6):
        for k in range(8):
            r = 48 + 8 * j + k
            a(f'v_lshlrev_b32 v116, 16, v{r}')
            a(f'v_and_b32 v117, 0xffff0000, v{r}')
            a(f'v_pk_add_f32 v[{acc+2*k}:{acc+2*k+1}], v[{acc+2*k}:{acc+2*k+1}], v[116:117]')
    for k in range(8):
        gbp = 96 + 2 * (k & 1)
        a(f'v_pk_fma_f32 v[{100+2*k}:{101+2*k}], v[{acc+2*k}:{acc+2*k+1}], v[{gbp}:{gbp+1}], v[{100+2*k}:{101+2*k}]')
    for u in range(4):
        a(f'v_cvt_pk_bf16_f32 v{48+2*u}, v{100+4*u}, v{101+4*u}')
        a(f'v_cvt_pk_bf16_f32 v{49+2*u}, v{102+4*u}, v{103+4*u}')
        a(f'buffer_store_dwordx2 v[{48+2*u}:{49+2*u}], v4, s[{SRD_A}:{SRD_A+3}], s{S_T+13} offen')
        if u < 3: a(f's_add_u32 s{S_T+13}, s{S_T+13}, {16*896}')
    stamp(16)
    stamp_flush()
    a('s_endpgm')

    a.label('L_spare')
    a.restore(fork)
    SJ = S_D0
    a(f's_sub_u32 s{SJ}, s2, 224')
    a(f's_min_u32 s{S_T+4}, s{SJ}, 20')
    a(f's_lshl_b32 s{S_T+5}, s{S_T+4}, 6')
    a(f's_add_u32 s{S_T+5}, s{S_T+5}, {3*896}')
    a(f's_sub_u32 s{S_T+6}, s{S_T+4}, 14')
    a(f's_lshl_b32 s{S_T+6}, s{S_T+6}, 7')
    a(f's_add_u32 s{S_T+6}, s{S_T+6}, {5*896}')
    a(f's_cmp_lt_u32 s{S_T+4}, 14')
    a(f's_cselect_b32 s{S_T+5}, s{S_T+5}, s{S_T+6}')
    a(f's_cselect_b32 s{S_T+6}, {896 - 64}, 0')
    a('v_lshrrev_b32 v8, 3, v1')
    a('v_and_b32 v9, 7, v1')
    a(f's_mul_i32 s{S_T+7}, s{S_WAVE}, 56')
    a(f'v_add_u32 v8, s{S_T+7}, v8')
    a('v_lshlrev_b32 v10, 1, v8')
    for it in range(7):
        a(f'global_load_short_d16_hi v{16+it}, v10, s[{P_C}:{P_C+1}] offset:{16*it}')
    a('v_mul_u32_u24 v11, 5376, v8')
    a('v_lshl_add_u32 v11, v9, 4, v11')
    a('v_lshrrev_b32 v12, 2, v9')
    a(f'v_mul_lo_u32 v12, v12, s{S_T+6}')
    a(f'v_add3_u32 v11, v11, v12, s{S_T+5}')
    for it in range(7):
        a(f'global_load_dwordx4 v[{64+4*it}:{67+4*it}], v11, s[{P_WM}:{P_WM+1}]')
        if it < 6: a(f'v_add_u32 v11, {8*5376}, v11')
    JS, JM, JH, JK = S_RT, S_S, S_SA0, S_SA1
    a(f's_min_u32 s{S_T+8}, s{SJ}, 27')
    a(f's_lshr_b32 s{JS}, s{S_T+8}, 2')
    a(f's_bfe_u32 s{JM}, s{S_T+8}, 0x10001')
    a(f's_and_b32 s{JH}, s{S_T+8}, 1')
    a(f's_min_u32 s{JK}, s{S_WAVE}, 6')
    a(f's_lshl_b32 s{JK}, s{JK}, 1')
    a(f's_mul_i32 s{S_T+8}, s{JH}, 14')
    a(f's_add_u32 s{JK}, s{JK}, s{S_T+8}')
    a(f's_cmp_eq_u32 s{JM}, 0')
    a(f's_cselect_b32 s{S_T+10}, s{P_WG}, s{P_WU}')
    a(f's_cselect_b32 s{S_T+11}, s{P_WG+1}, s{P_WU+1}')
    a('v_lshrrev_b32 v13, 5, v1')
    a('v_and_b32 v14, 31, v1')
    a(f'v_mul_u32_u24 v15, {8*3584}, v13')
    a('v_lshl_add_u32 v15, v14, 4, v15')
    a(f's_mul_i32 s{S_T+8}, s{JK}, {16*3584}')
    a(f's_lshl_b32 s{S_T+9}, s{JS}, 9')
    a(f's_add_u32 s{S_T+8}, s{S_T+8}, s{S_T+9}')
    a(f'v_add_u32 v15, s{S_T+8}, v15')
    RW = 128
    stats_block(nyounger=14)
    for un in range(2):
        for j in range(8):
            r = RW + (un * 8 + j) * 4
            a(f'global_load_dwordx4 v[{r}:{r+3}], v15, s[{S_T+10}:{S_T+11}]')
            a(f'v_add_u32 v15, {3584 if j < 7 else 9*3584}, v15')
    for it in range(7):
        silu_bf16(16 + it, 16 + it, 24)
    for e in range(8): a(f'v_mov_b32 v{24+e}, 0')
    for it in range(7):
        for k in range(4):
            a(f'v_lshlrev_b32 v32, 16, v{64+4*it+k}')
            a(f'v_and_b32 v33, 0xffff0000, v{64+4*it+k}')
            a(f'v_fmac_f32 v{24+2*k}, v32, v{16+it}')
            a(f'v_fmac_f32 v{25+2*k}, v33, v{16+it}')
    for e in range(8):
        a(f'v_add_f32_dpp v{24+e}, v{24+e}, v{24+e} row_ror:8 row_mask:0xf bank_mask:0xf')
    for sw in ('v_permlane16_swap_b32', 'v_permlane32_swap_b32'):
        for e in range(8): a(f'v_mov_b32 v{32+e}, v{24+e}')
        for e in range(8): a(f'{sw} v{24+e}, v{32+e}')
        for e in range(8): a(f'v_add_f32 v{24+e}, v{24+e}, v{32+e}')
    a(f's_lshl_b32 s{S_T+8}, s{S_WAVE}, 8')
    a(f'v_lshl_add_u32 v32, v9, 5, s{S_T+8}')
    a('s_mov_b64 exec, 0xff')
    a('ds_write_b128 v32, v[24:27]')
    a('ds_write_b128 v32, v[28:31] offset:16')
    a('s_mov_b64 exec, -1')
    a.barrier()
    a('v_lshlrev_b32 v32, 2, v1')
    for w in range(8):
        a(f'ds_read_b32 v{24+w}, v32 offset:{256*w}')
    a('v_add_f32 v24, v24, v25'); a('v_add_f32 v26, v26, v27'); a('v_add_f32 v28, v28, v29'); a('v_add_f32 v30, v30, v31')
    a('v_add_f32 v24, v24, v26'); a('v_add_f32 v28, v28, v30'); a('v_add_f32 v24, v24, v28')
    a('v_cvt_pk_bf16_f32 v24, v24, v24')
    a('v_lshlrev_b32 v24, 16, v24')
    a('v_add_f32 v25, 1.0, v24')
    a('v_mov_b32 v27, v25')
    a('v_permlane32_swap_b32 v25, v27')
    a('v_cvt_pk_bf16_f32 v28, v27, v24')
    a('v_mov_b32_dpp v26, v24 quad_perm:[1,1,3,3] row_mask:0xf bank_mask:0xf')
    a('v_cvt_pk_bf16_f32 v30, v24, v26')
    a(f'v_mov_b32 v29, s{S_TAG}')
    a(f'v_mov_b32 v31, s{S_TAG}')
    st = a.snap()
    a(f's_cmp_lg_u32 s{S_WAVE}, 0')
    a('s_cbranch_scc1 L_gv2')
    a(f's_cmp_ge_u32 s{SJ}, 21')
    a('s_cbranch_scc1 L_gv2')
    a(f's_cmp_ge_u32 s{SJ}, 14')
    a('s_cbranch_scc1 L_gv1')
    a(f's_lshl_b32 s{S_T+8}, s{SJ}, 8')
    a(f's_add_u32 s{S_T+8}, s{S_T+8}, {WS_MG}')
    a('v_lshlrev_b32 v32, 3, v1')
    a('s_mov_b32 exec_hi, 0')
    a(f'buffer_store_dwordx2 v[28:29], v32, {WSR}, s{S_T+8} offen sc1')
    a('s_mov_b64 exec, -1')
    a('s_branch L_gv2')
    a.label('L_gv1')
    a(f's_lshl_b32 s{S_T+8}, s{SJ}, 8')
    a(f's_add_u32 s{S_T+8}, s{S_T+8}, {WS_GB - 14*256}')
    a('v_lshlrev_b32 v32, 2, v1')
    a('s_mov_b32 exec_lo, 0x55555555')
    a('s_mov_b32 exec_hi, 0x55555555')
    a(f'buffer_store_dwordx2 v[30:31], v32, {WSR}, s{S_T+8} offen sc1')
    a('s_mov_b64 exec, -1')
    a.label('L_gv2')
    a.restore(st)
    stamp(1)
    a(f's_cmp_ge_u32 s{SJ}, 28')
    a('s_cbranch_scc1 L_spend')
    a(f's_lshl_b32 s{S_T+8}, s{JK}, 7')
    a(f's_add_u32 s{S_T+8}, s{S_T+8}, {WS_MG}')
    a(f's_mov_b32 s{S_T+9}, {WS_ST1}')
    a('v_lshlrev_b32 v32, 6, v13')
    a('v_mov_b32 v33, 0')
    def issue():
        for un in range(2):
            for k in range(4):
                r = 64 + un * 16 + 4 * k
                a(f'buffer_load_dwordx4 v[{r}:{r+3}], v32, {WSR}, s{S_T+8} offen offset:{un*128 + 16*k} sc1')
        a(f'buffer_load_dwordx2 v[96:97], v33, {WSR}, s{S_T+9} offen sc1')
    def check():
        a(f'v_xor_b32 v34, s{S_TAG}, v97')
        for k in range(16):
            a(f'v_xor_b32 v35, s{S_TAG}, v{65+2*k}')
            a('v_or_b32 v34, v34, v35')
        a('v_cmp_ne_u32 vcc, 0, v34')
    poll(issue, check)
    stamp(2)
    a(f's_mul_i32 s{S_T+8}, s{JS}, {8*29}')
    a(f's_add_u32 s{S_T+8}, s{S_T+8}, s{JK}')
    a(f's_lshl_b32 s{S_T+8}, s{S_T+8}, 1')
    a(f's_add_u32 s{S_T+8}, s{S_T+8}, s{JM}')
    a(f's_lshl_b32 s{S_T+8}, s{S_T+8}, 10')
    a(f's_add_u32 s{S_T+8}, s{S_T+8}, {WS_W1F}')
    C1, C0 = 16, 24
    for e in range(16): a(f'v_mov_b32 v{16+e}, 0')
    a('v_mov_b32 v12, 0x3f803f80')
    OUTR = 192
    for un in range(2):
        for j in range(8):
            g = 64 + un * 16 + 2 * j
            a(f'v_lshlrev_b32 v{98+j}, 16, v{g}')
            a(f'v_and_b32 v{106+j}, 0xffff0000, v{g}')
        for jp in range(4):
            for k in range(4):
                r0 = RW + (un * 8 + 2 * jp) * 4 + k; r1 = r0 + 4
                a(f'v_lshlrev_b32 v36, 16, v{r0}')
                a(f'v_and_b32 v37, 0xffff0000, v{r0}')
                a(f'v_lshlrev_b32 v38, 16, v{r1}')
                a(f'v_and_b32 v39, 0xffff0000, v{r1}')
                a(f'v_fmac_f32 v{C0+2*k}, v36, v{106+2*jp}')
                a(f'v_fmac_f32 v{C0+2*k+1}, v37, v{106+2*jp}')
                a(f'v_fmac_f32 v{C0+2*k}, v38, v{107+2*jp}')
                a(f'v_fmac_f32 v{C0+2*k+1}, v39, v{107+2*jp}')
                a(f'v_mul_f32 v36, v36, v{98+2*jp}')
                a(f'v_mul_f32 v37, v37, v{98+2*jp}')
                a(f'v_mul_f32 v38, v38, v{99+2*jp}')
                a(f'v_mul_f32 v39, v39, v{99+2*jp}')
                a(f'v_cvt_pk_bf16_f32 v{OUTR + un*32 + (2*k)*4 + jp}, v36, v38')
                a(f'v_cvt_pk_bf16_f32 v{OUTR + un*32 + (2*k+1)*4 + jp}, v37, v39')
        for t in range(8):
            r = OUTR + un * 32 + t * 4
            a(f's_add_u32 s{S_T+9}, s{S_T+8}, {t*29*2048 + un*2048}')
            a(f'buffer_store_dwordx4 v[{r}:{r+3}], v2, {WSR}, s{S_T+9} offen sc1')
        for jp in range(4):
            for t in range(8):
                a(f'v_dot2c_f32_bf16 v{C1+t}, v{OUTR + un*32 + t*4 + jp}, v12')
    a('s_nop 3')
    for t in range(8): a(f'v_permlane32_swap_b32 v{C1+t}, v{C0+t}')
    for t in range(8): a(f'v_add_f32 v{C1+t}, v{C1+t}, v{C0+t}')
    a(f's_lshl_b32 s{S_T+9}, s{S_WAVE}, 11')
    a(f's_add_u32 s{S_T+9}, s{S_T+9}, 4096')
    a(f'v_lshl_add_u32 v32, v1, 5, s{S_T+9}')
    a(f'ds_write_b128 v32, v[{C1}:{C1+3}]')
    a(f'ds_write_b128 v32, v[{C1+4}:{C1+7}] offset:16')
    a(f's_lshl_b32 s{S_T+9}, s{S_WAVE}, 2')
    a(f's_add_u32 s{S_T+9}, s{S_T+9}, 4096')
    a(f'v_lshl_add_u32 v32, v1, 5, s{S_T+9}')
    a.barrier()
    for w in range(7):
        a(f'ds_read_b32 v{40+w}, v32 offset:{2048*w}')
    a('v_add_f32 v40, v40, v41'); a('v_add_f32 v42, v42, v43'); a('v_add_f32 v44, v44, v45'); a('v_add_f32 v40, v40, v46')
    a('v_add_f32 v42, v42, v44'); a('v_add_f32 v40, v40, v42')
    a('v_cvt_pk_bf16_f32 v41, v40, v40')
    a('v_lshlrev_b32 v41, 16, v41')
    a('v_sub_f32 v42, v40, v41')
    a('v_cvt_pk_bf16_f32 v42, v41, v42')
    a('v_mov_b32 v43, v42')
    a('v_permlane32_swap_b32 v42, v43')
    a(f's_lshl_b32 s{S_T+8}, s{JS}, 3')
    a(f's_add_u32 s{S_T+8}, s{S_T+8}, s{S_WAVE}')
    a(f's_mul_i32 s{S_T+8}, s{S_T+8}, {29*2048}')
    a(f's_lshl_b32 s{S_T+9}, s{JM}, 10')
    a(f's_add_u32 s{S_T+8}, s{S_T+8}, s{S_T+9}')
    a(f's_lshl_b32 s{S_T+9}, s{JH}, 3')
    a(f's_add_u32 s{S_T+8}, s{S_T+8}, s{S_T+9}')
    a(f's_add_u32 s{S_T+8}, s{S_T+8}, {WS_W1F + 28*2048}')
    a(f'buffer_store_dwordx2 v[42:43], v2, {WSR}, s{S_T+8} offen sc1')
    a.force_wait(vm=0)
    a('s_barrier')
    a(f's_cmp_lg_u32 s{S_WAVE}, 0')
    a('s_cbranch_scc1 L_end')
    a('v_mov_b32 v40, 1')
    a('v_lshlrev_b32 v41, 8, v1')
    a(f's_mov_b32 s{S_T+9}, {CNT_W}')
    a('s_mov_b64 exec, 0xff')
    a(f'buffer_atomic_add v40, v41, {WSR}, s{S_T+9} offen sc1')
    a('s_mov_b64 exec, -1')
    stamp(3)
    a.label('L_spend')
    stamp_flush()
    a.label('L_end')
    a('s_endpgm')
    ref = open('adaLN_cond__ssm_conv_s4__glu_gated_bilinear__prompt.s.ref').read()
    head = ''.join(l + '\n' for l in ref.split('\n') if l.startswith(';') and '@launch' not in l and 'Override' not in l and 'grid=ceil' not in l)
    txt = head + f'; @launch grid=(256,1,1) block=(512,1,1) lds={LDS_BYTES}\n' + HEADER + kernel_text(KN, a.text())
    txt += '.section .rodata,"a"\n' + kernel_desc(KN, 256, 102)
    return txt

if __name__ == '__main__':
    out = sys.argv[1] if len(sys.argv) > 1 else 'adaLN_cond__ssm_conv_s4__glu_gated_bilinear__prompt.s'
    dbg = 'debug' in sys.argv; stm = 'stamps' in sys.argv
    open(out, 'w').write(build(debug=dbg, stamps=stm))
    print('wrote', out)
```

```python
import sys, struct
sys.path.insert(0, 'work')
from asmgen import *

KN = 'adaLN_cond__ssm_conv_s4__glu_gated_bilinear__prompt_kernel'
def fhex(x): return '0x%08x' % struct.unpack('<I', struct.pack('<f', x))[0]
LOG2E = fhex(1.4426950408889634)
INV2PI = fhex(0.15915494309189535)

WS_EPOCH = 0
WS_CNT = 0x1000
CNT_S2 = WS_CNT
CNT_W = WS_CNT + 16 * 256
CNT_G = WS_CNT + 24 * 256
WS_ST1 = 0x8000
WS_MG = 0xC000
WS_GB = 0xD000
WS_X1T = 0x100000
WS_W1F = 0x300000
WS_WDF = 0x700000
WS_PART = 0x900000
WS_DUMP = 0x2000000
WS_TS = 0x3000000
AB_ROW = 1056
AB_CH = 53 * AB_ROW
L_TAB = 112000
L_MP = 118144
L_KC = 0; KC_COPY = 4160; KC_CH = 8 * KC_COPY
L_U = 66560; U_PL = 1280; U_CH = 4 * U_PL
L_XL = 76800; XL_PL = 1024; XL_CH = 4096
L_EX = 120064
L_XT = 0; L_HH = 57344; L_SP = 90112
LDS_BYTES = 153600
S_WAVE = 3
P_X, P_ARE, P_AIM, P_BRE, P_BIM, P_CRE, P_CIM, P_LDT = 16, 18, 20, 22, 24, 26, 28, 30
P_DSK, P_WG, P_WU, P_WD, P_C, P_WM, P_OUT, P_DBG, P_WS = 32, 36, 38, 40, 42, 44, 46, 48, 50
SRD_WS = 52; SRD_A = 56
S_TAG = 60
S_X8, S_I, S_D0, S_RT, S_S = 61, 62, 63, 64, 65
S_SA0, S_SA1, S_CA0, S_CA1, S_GA, S_DK, S_LDT = 66, 67, 68, 69, 70, 71, 72
S_T = 74
S_TS = 90
POLL_MAX = 20000

def build(debug=False, stamps=False, stop=99):
    a = Asm()
    nst = [0]
    def stamp(i):
        if not stamps: return
        lab = f'L_st{nst[0]}'; nst[0] += 1
        st = a.snap()
        a(f's_cmp_lg_u32 s{S_WAVE}, 0')
        a(f's_cbranch_scc1 {lab}')
        a(f's_memrealtime s[{S_TS}:{S_TS+1}]')
        a.force_wait(lg=0)
        a(f'v_writelane_b32 v255, s{S_TS}, {i}')
        a.label(lab)
        lg = []
        a.restore(st)
    def stamp_flush(conv=False):
        if not stamps: return
        lab = f'L_st{nst[0]}'; nst[0] += 1
        a(f's_cmp_lg_u32 s{S_WAVE}, 0')
        a(f's_cbranch_scc1 {lab}')
        a(f's_lshl_b32 s{S_TS+2}, s2, 8')
        a(f's_add_u32 s{S_TS+2}, s{S_TS+2}, {WS_TS}')
        a(f'v_lshlrev_b32 v254, 2, v1')
        a(f'buffer_store_dword v255, v254, s[{SRD_WS}:{SRD_WS+3}], s{S_TS+2} offen')
        if conv:
            a('v_not_b32 v253, v255')
            a('v_cmp_eq_u32 vcc, 0, v1')
            a('v_cndmask_b32 v255, v255, v253, vcc')
            a('v_mov_b32 v253, 60')
            a('v_cmp_eq_u32 vcc, 16, v1')
            a('v_cndmask_b32 v254, v254, v253, vcc')
            a('v_mov_b32 v253, 64')
            a('v_cmp_eq_u32 vcc, 15, v1')
            a('v_cndmask_b32 v254, v254, v253, vcc')
            a('s_mov_b64 exec, 0x1ffff')
            a(f'global_atomic_umax v254, v255, s[{P_DBG}:{P_DBG+1}] sc1')
            a('s_mov_b64 exec, -1')
        a.label(lab)

    def wave_reduce(regs):
        for mod in ('row_shr:1 row_mask:0xf', 'row_shr:2 row_mask:0xf', 'row_shr:4 row_mask:0xf', 'row_shr:8 row_mask:0xf',
                    'row_bcast:15 row_mask:0xa', 'row_bcast:31 row_mask:0xc'):
            for r in regs:
                a(f'v_add_f32_dpp v{r}, v{r}, v{r} {mod} bank_mask:0xf')
    def silu_bf16(dst, c, t):
        a(f'v_mul_f32 v{t}, {fhex(-1.4426950408889634)}, v{c}')
        a(f'v_exp_f32 v{t}, v{t}')
        a(f'v_add_f32 v{t}, 1.0, v{t}')
        a(f'v_rcp_f32 v{t}, v{t}')
        a(f'v_mul_f32 v{t}, v{c}, v{t}')
        a(f'v_cvt_pk_bf16_f32 v{t}, v{t}, v{t}')
        a(f'v_lshlrev_b32 v{dst}, 16, v{t}')
    npoll = [0]
    def poll(issue, check, sleep=1):
        n = npoll[0]; npoll[0] += 1
        a(f's_mov_b32 s{S_T+15}, 0')
        a.label(f'L_poll{n}')
        issue()
        a.force_wait(vm=0)
        check()
        a(f's_cbranch_vccz L_pdone{n}')
        if sleep: a(f's_sleep {sleep}')
        a(f's_add_u32 s{S_T+15}, s{S_T+15}, 1')
        a(f's_cmp_lt_u32 s{S_T+15}, {POLL_MAX}')
        a(f's_cbranch_scc1 L_poll{n}')
        a.label(f'L_pdone{n}')

    WSR = f's[{SRD_WS}:{SRD_WS+3}]'
    a('s_cmp_ge_u32 s2, 256')
    a('s_cbranch_scc1 L_end')
    a('s_load_dwordx16 s[16:31], s[0:1], 0')
    a('s_load_dwordx16 s[32:47], s[0:1], 64')
    a('s_load_dwordx4 s[48:51], s[0:1], 128')
    a('v_and_b32 v1, 63, v0')
    a('v_lshrrev_b32 v3, 6, v0')
    a('v_lshlrev_b32 v2, 4, v1')
    a(f'v_readfirstlane_b32 s{S_WAVE}, v3')
    a(f's_and_b32 s{S_X8}, s2, 7')
    a(f's_lshr_b32 s{S_I}, s2, 3')
    if stamps: a('v_mov_b32 v255, 0')
    a(f's_lshl_b32 s{S_T}, s2, 3')
    a(f's_add_u32 s{S_T}, s{S_T}, s{S_WAVE}')
    a(f's_mul_i32 s{S_T+1}, s{S_T}, 896')
    a.wait(lg=0)
    a(f's_load_dword s{S_TAG}, s[{P_WS}:{P_WS+1}], {WS_EPOCH}')
    a(f's_add_u32 s{SRD_A}, s{P_X}, s{S_T+1}')
    a(f's_addc_u32 s{SRD_A+1}, s{P_X+1}, 0')
    a(f's_mov_b32 s{SRD_A+2}, 896')
    a(f's_mov_b32 s{SRD_A+3}, 0x20000')
    a(f'buffer_load_dwordx4 v[4:7], v2, s[{SRD_A}:{SRD_A+3}], 0 offen')
    a(f's_mov_b32 s{SRD_WS}, s{P_WS}')
    a(f's_mov_b32 s{SRD_WS+1}, s{P_WS+1}')
    a(f's_mov_b32 s{SRD_WS+2}, 0x10000000')
    a(f's_mov_b32 s{SRD_WS+3}, 0x20000')
    stamp(0)
    a(f's_or_b32 s{S_T+2}, s2, s{S_WAVE}')
    a(f's_cmp_eq_u32 s{S_T+2}, 0')
    a(f's_cselect_b32 s{S_T+2}, {WS_CNT}, s{SRD_WS+2}')
    a(f'v_lshl_add_u32 v3, v1, 8, s{S_T+2}')
    a('v_mov_b32 v34, 0')
    a(f'buffer_store_dword v34, v3, {WSR}, 0 offen sc1')
    a('s_cmp_ge_u32 s2, 224')
    a('s_cbranch_scc1 L_spare')
    fork = a.snap()

    def stats_block(nyounger):
        for i in range(4):
            a(f'v_lshlrev_b32 v{36+2*i}, 16, v{4+i}')
            a(f'v_and_b32 v{37+2*i}, 0xffff0000, v{4+i}')
        a('v_add_f32 v34, v36, v37')
        a('v_add_f32 v35, v38, v39')
        a('v_add_f32 v44, v40, v41')
        a('v_add_f32 v45, v42, v43')
        a('v_add_f32 v34, v34, v35')
        a('v_add_f32 v44, v44, v45')
        a('v_add_f32 v34, v34, v44')
        wave_reduce([34])
        a(f'v_readlane_b32 s{S_T+3}, v34, 63')
        a('v_mov_b32 v35, 0')
        a(f'v_mov_b32 v44, {fhex(1/448)}')
        a(f'v_mul_f32 v34, s{S_T+3}, v44')
        a(f's_mov_b32 exec_hi, 0x00ffffff')
        for i in range(8):
            a(f'v_sub_f32 v{36+i}, v{36+i}, v34')
        for i in range(8):
            a(f'v_fmac_f32 v35, v{36+i}, v{36+i}')
        a(f's_mov_b32 exec_hi, -1')
        wave_reduce([35])
        a(f'v_readlane_b32 s{S_T+3}, v35, 63')
        a(f'v_mul_f32 v35, s{S_T+3}, v44')
        a('v_cvt_pk_bf16_f32 v35, v35, v35')
        a('v_lshlrev_b32 v35, 16, v35')
        a(f'v_add_f32 v35, {fhex(1e-5)}, v35')
        a('v_cvt_pk_bf16_f32 v35, v35, v35')
        a('v_lshlrev_b32 v35, 16, v35')
        a('v_sqrt_f32 v35, v35')
        a.wait(lg=0)
        a(f's_add_u32 s{S_TAG}, s{S_TAG}, 1')
        a('v_cvt_pk_bf16_f32 v36, v34, v35')
        a(f'v_mov_b32 v37, s{S_TAG}')
        a(f's_lshl_b32 s{S_T+3}, s{S_T}, 3')
        a(f's_add_u32 s{S_T+3}, s{S_T+3}, {WS_ST1}')
        a('v_mov_b32 v38, 0')
        a.force_wait(vm=nyounger)
        a('s_mov_b64 exec, 1')
        a(f'buffer_store_dwordx2 v[36:37], v38, {WSR}, s{S_T+3} offen sc1')
        a('s_mov_b64 exec, -1')

    a(f's_mul_i32 s{S_D0}, s{S_X8}, 28')
    a(f's_add_u32 s{S_T+4}, s{S_D0}, s{S_I}')
    a(f's_lshl_b32 s{S_D0}, s{S_T+4}, 1')
    a(f's_mul_i32 s{S_T+5}, s{S_I}, 9363')
    a(f's_lshr_b32 s{S_T+5}, s{S_T+5}, 16')
    a(f's_mul_i32 s{S_S}, s{S_T+5}, 7')
    a(f's_sub_u32 s{S_S}, s{S_I}, s{S_S}')
    a(f's_lshl_b32 s{S_RT}, s{S_X8}, 2')
    a(f's_add_u32 s{S_RT}, s{S_RT}, s{S_T+5}')
    a(f's_lshl_b32 s{S_T+5}, s{S_D0}, 9')
    a(f'v_lshl_add_u32 v3, v0, 1, s{S_T+5}')
    for i, p in enumerate((P_ARE, P_AIM, P_BRE, P_BIM, P_CRE, P_CIM)):
        a(f'global_load_short_d16_hi v{8+i}, v3, s[{p}:{p+1}]')
    a(f's_lshl_b32 s{S_T+5}, s{S_D0}, 1')
    a(f's_load_dword s{S_LDT}, s[{P_LDT}:{P_LDT+1}], s{S_T+5}')
    a(f's_load_dword s{S_DK}, s[{P_DSK}:{P_DSK+1}], s{S_T+5}')
    a('v_min_u32 v50, 447, v0')
    a('v_lshlrev_b32 v51, 1, v50')
    a(f'global_load_short_d16_hi v14, v51, s[{P_C}:{P_C+1}]')
    a(f'v_mul_u32_u24 v51, 5376, v50')
    a(f'v_add_u32 v51, s{S_T+5}, v51')
    for i in range(3):
        a(f'global_load_dword v{15+i}, v51, s[{P_WM}:{P_WM+1}] offset:{896*i}')
    GA = 100
    a('v_and_b32 v52, 255, v0')
    a('v_lshlrev_b32 v52, 3, v52')
    a('v_lshrrev_b32 v53, 8, v0')
    a(f'v_mul_u32_u24 v53, 3072, v53')
    a(f'v_add_u32 v53, {L_TAB}, v53')
    for t in range(15):
        r = GA + t
        a(f'v_add_u32 v{r}, {7 - t}, v52')
        a(f'v_cvt_f32_i32 v54, v{r}')
        a(f'v_cvt_pk_bf16_f32 v54, v54, v54')
        a(f'v_and_b32 v54, 0xffff, v54')
        a(f'v_subrev_u32 v54, {0x4300 - 128}, v54')
        a(f'v_min_i32 v55, 127, v{r}')
        a(f'v_max_i32 v54, v54, v55')
        if t > 7:
            a(f'v_cmp_gt_i32 vcc, 0, v{r}')
            a(f'v_mov_b32 v55, 767')
            a(f'v_cndmask_b32 v54, v54, v55, vcc')
        a(f'v_lshl_add_u32 v{r}, v54, 2, v53')
    stats_block(nyounger=10)
    stamp(1)
    a(f's_add_u32 s{S_T+6}, s{P_X}, s{S_T+5}')
    a(f's_addc_u32 s{S_T+7}, s{P_X+1}, 0')
    a('v_mul_u32_u24 v3, 3584, v0')
    for e in range(4):
        a(f'global_load_dword v{18+e}, v3, s[{S_T+6}:{S_T+7}] offset:{896*e}')
    a(f's_lshr_b32 s{S_T+8}, s{S_T+4}, 5')
    a(f's_bfe_u32 s{S_T+9}, s{S_T+4}, 0x30002')
    a(f's_and_b32 s{S_T+10}, s{S_T+4}, 3')
    a(f's_mul_i32 s{S_T+10}, s{S_T+10}, 7')
    a(f's_min_u32 s{S_T+11}, s{S_WAVE}, 6')
    a(f's_add_u32 s{S_T+10}, s{S_T+10}, s{S_T+11}')
    a(f's_lshl_b32 s{S_T+11}, s{S_T+8}, 8')
    a(f's_add_u32 s{S_T+11}, s{S_T+11}, s{S_T+9}')
    a(f's_mul_i32 s{S_T+11}, s{S_T+11}, 896')
    a(f's_lshl_b32 s{S_T+12}, s{S_T+10}, 5')
    a(f's_add_u32 s{S_T+11}, s{S_T+11}, s{S_T+12}')
    a('v_lshrrev_b32 v56, 5, v1')
    a('v_bfe_u32 v57, v1, 4, 1')
    a(f'v_mul_u32_u24 v56, {128*896}, v56')
    a(f'v_mul_u32_u24 v57, {32*896}, v57')
    a('v_and_b32 v58, 15, v1')
    a('v_lshlrev_b32 v58, 1, v58')
    a('v_add3_u32 v56, v56, v57, v58')
    a(f's_mov_b32 s{SRD_A}, s{P_WD}')
    a(f's_mov_b32 s{SRD_A+1}, s{P_WD+1}')
    a(f's_mov_b32 s{SRD_A+2}, {1792*896}')
    for j in range(8):
        a(f's_add_u32 s{S_T+12}, s{S_T+11}, {(64*(j>>2) + 8*(j&3)) * 896}')
        a(f'buffer_load_short_d16{"_hi" if j & 1 else ""} v{22+j}, v56, s[{SRD_A}:{SRD_A+3}], s{S_T+12} offen')
    a(f's_mul_i32 s{S_T+8}, s{S_T+8}, 28')
    a(f's_add_u32 s{S_T+8}, s{S_T+8}, s{S_T+10}')
    a(f's_lshl_b32 s{S_T+8}, s{S_T+8}, 3')
    a(f's_add_u32 s{S_T+8}, s{S_T+8}, s{S_T+9}')
    a(f's_lshl_b32 s{S_T+8}, s{S_T+8}, 10')
    a(f's_add_u32 s{S_T+8}, s{S_T+8}, {WS_WDF}')
    silu_bf16(50, 14, 51)
    a('v_cmp_gt_u32 vcc, 448, v0')
    a('v_cndmask_b32 v50, 0, v50, vcc')
    for i in range(3):
        a(f'v_lshlrev_b32 v{52+2*i}, 16, v{15+i}')
        a(f'v_and_b32 v{53+2*i}, 0xffff0000, v{15+i}')
    for i in range(6):
        a(f'v_mul_f32 v{52+i}, v{52+i}, v50')
    wave_reduce(list(range(52, 58)))
    a(f's_lshl_b32 s{S_T+9}, s{S_WAVE}, 5')
    a(f's_add_u32 s{S_T+9}, s{S_T+9}, {L_MP}')
    a(f'v_mov_b32 v50, s{S_T+9}')
    a('v_mov_b32 v58, 0')
    a('v_mov_b32 v59, 0')
    a('s_mov_b32 exec_lo, 0')
    a('s_mov_b32 exec_hi, 0x80000000')
    a('ds_write_b128 v50, v[52:55]')
    a('ds_write_b128 v50, v[56:59] offset:16')
    a('s_mov_b64 exec, -1')
    a(f's_lshl_b32 s{S_T+9}, s{S_LDT}, 16')
    a(f's_and_b32 s{S_T+10}, s{S_LDT}, 0xffff0000')
    a(f's_cmp_ge_u32 s{S_WAVE}, 4')
    a(f's_cselect_b32 s{S_T+9}, s{S_T+10}, s{S_T+9}')
    a(f'v_mov_b32 v60, {LOG2E}')
    a(f'v_mul_f32 v60, s{S_T+9}, v60')
    a('v_exp_f32 v60, v60')
    a('v_cvt_pk_bf16_f32 v60, v60, v60')
    a('v_lshlrev_b32 v60, 16, v60')
    a('v_mul_f32 v61, v60, v8')
    a('v_mul_f32 v62, v60, v9')
    a(f'v_mul_f32 v61, {LOG2E}, v61')
    a(f'v_mul_f32 v62, {INV2PI}, v62')
    a('v_mul_f32 v10, v60, v10')
    a('v_mul_f32 v11, v60, v11')
    W_, E1, E2, E4, E8, E16, E256, CA, CB0, CB1, CA2, T0, T1, T2 = 64, 66, 68, 70, 72, 74, 76, 78, 80, 82, 84, 86, 88, 90
    a(f'v_mul_f32 v{W_}, v12, v10')
    a(f'v_mul_f32 v{W_+1}, v12, v11')
    a(f'v_fma_f32 v{W_}, -v13, v11, v{W_}')
    a(f'v_fma_f32 v{W_+1}, v13, v10, v{W_+1}')
    for r, t in ((E1, 1.0), (E8, 8.0), (E256, 256.0)):
        a(f'v_mul_f32 v{T0}, {fhex(t)}, v61')
        a(f'v_mul_f32 v{T0+1}, {fhex(t)}, v62')
        a(f'v_exp_f32 v{T0}, v{T0}')
        a(f'v_fract_f32 v{T0+1}, v{T0+1}')
        a(f'v_cos_f32 v{r}, v{T0+1}')
        a(f'v_sin_f32 v{r+1}, v{T0+1}')
        a(f'v_mul_f32 v{r}, v{r}, v{T0}')
        a(f'v_mul_f32 v{r+1}, v{r+1}, v{T0}')
    def cmul_ops(d, x, y, t):
        return [f'v_pk_mul_f32 v[{t}:{t+1}], v[{x}:{x+1}], v[{y}:{y+1}] op_sel_hi:[0,1]',
                f'v_pk_fma_f32 v[{d}:{d+1}], v[{x}:{x+1}], v[{y}:{y+1}], v[{t}:{t+1}] op_sel:[1,1,0] op_sel_hi:[1,0,1] neg_lo:[1,0,0]']
    a('v_and_b32 v63, 255, v0')
    a('v_lshlrev_b32 v63, 2, v63')
    a(f's_cmp_ge_u32 s{S_WAVE}, 4')
    a(f's_cselect_b32 s{S_T+9}, {AB_CH}, 0')
    a(f'v_add_u32 v63, s{S_T+9}, v63')
    pk = [92, 93, 94, 95, 96, 97]; pki = [0]
    def put(row, r, isA):
        p = pk[pki[0] % len(pk)]; pki[0] += 1
        return [f'v_cvt_pk_bf16_f32 v{p}, v{r}, {"-" if isA else ""}v{r+1}', f'ds_write_b32 v63, v{p} offset:{row*AB_ROW}']
    for o in cmul_ops(E2, E1, E1, T0) + cmul_ops(E16, E8, E8, T1) + cmul_ops(E4, E2, E2, T0): a(o)
    chA, chB0, chB1 = [], [], []
    chA += put(0, W_, True)
    chA += cmul_ops(CA, W_, E1, T0) + put(1, CA, True)
    for p in range(2, 8):
        chA += cmul_ops(CA, CA, E1, T0) + put(p, CA, True)
    chA += cmul_ops(CA, W_, E256, T0) + put(8, CA, True)
    chA += cmul_ops(CA2, CA, E2, T0) + put(9, CA2, True)
    chA += cmul_ops(CA2, CA2, E2, T0) + put(10, CA2, True)
    chA += cmul_ops(CA2, CA2, E2, T0) + put(11, CA2, True)
    chA += cmul_ops(CA, CA, E256, T0) + put(12, CA, True)
    chA += cmul_ops(CA2, CA, E4, T0) + put(13, CA2, True)
    chA += cmul_ops(CA, CA, E256, T0) + put(14, CA, True)
    chA += cmul_ops(CA2, CA, E4, T0) + put(15, CA2, True)
    for r in range(16, 21):
        chA += cmul_ops(CA, CA, E256, T0) + put(r, CA, True)
    chB0 += ['v_mov_b32 v98, 0x3f80', f'ds_write_b32 v63, v98 offset:{21*AB_ROW}']
    chB0 += put(21 + 2, E16, False)
    chB0 += cmul_ops(CB0, E16, E16, T1) + put(21 + 4, CB0, False)
    for j in range(6, 32, 2):
        chB0 += cmul_ops(CB0, CB0, E16, T1) + put(21 + j, CB0, False)
    chB1 += put(21 + 1, E8, False)
    chB1 += cmul_ops(CB1, E8, E16, T2) + put(21 + 3, CB1, False)
    for j in range(5, 32, 2):
        chB1 += cmul_ops(CB1, CB1, E16, T2) + put(21 + j, CB1, False)
    def fixpk(ch, regs):
        out = []; k = 0
        for o in ch:
            if o.startswith('v_cvt_pk'):
                p = regs[k % len(regs)]; k += 1
                parts = o.split(' ', 2); o = f'{parts[0]} v{p}, {parts[2]}'; last = p
            elif o.startswith('ds_write') and 'v98' not in o:
                o = o.replace(o.split(', ')[1].split(' ')[0], f'v{last}')
            out.append(o)
        return out
    chA = fixpk(chA, [92, 93]); chB0 = fixpk(chB0, [94, 95]); chB1 = fixpk(chB1, [96, 97])
    n = max(len(chA), len(chB0), len(chB1))
    ia = ib = ic = 0
    while ia < len(chA) or ib < len(chB0) or ic < len(chB1):
        for _ in range(4):
            if ia < len(chA): a(chA[ia]); ia += 1
            if _ < 3:
                if ib < len(chB0): a(chB0[ib]); ib += 1
                if ic < len(chB1): a(chB1[ic]); ic += 1
    for j in range(4):
        a(f'v_or_b32 v{30+j}, v{22+2*j}, v{23+2*j}')
    a(f'buffer_store_dwordx4 v[30:33], v2, {WSR}, s{S_T+8} offen sc1')
    a(f's_bfe_u32 s{S_T+10}, s{S_WAVE}, 0x10001')
    a(f's_and_b32 s{S_T+11}, s{S_WAVE}, 1')
    a(f's_mul_i32 s{S_T+12}, s{S_T+10}, {16*AB_ROW}')
    a(f's_add_u32 s{S_T+12}, s{S_T+12}, s{S_T+9}')
    a(f's_mul_i32 s{S_T+13}, s{S_T+11}, {16*AB_ROW}')
    a(f's_add_u32 s{S_T+13}, s{S_T+13}, s{S_T+9}')
    a(f's_add_u32 s{S_T+13}, s{S_T+13}, {21*AB_ROW}')
    a('v_and_b32 v40, 15, v1')
    a('v_lshrrev_b32 v41, 4, v1')
    a(f'v_mul_u32_u24 v42, {AB_ROW}, v40')
    a('v_lshl_add_u32 v42, v41, 4, v42')
    a(f'v_add_u32 v43, s{S_T+13}, v42')
    a(f'v_add_u32 v42, s{S_T+12}, v42')
    a(f's_lshl_b32 s{S_T+11}, s{S_T+11}, 4')
    a(f'v_add_u32 v44, s{S_T+11}, v40')
    a(f's_cmp_ge_u32 s{S_WAVE}, 4')
    a(f's_cselect_b32 s{S_T+12}, 3072, 0')
    a(f's_add_u32 s{S_T+12}, s{S_T+12}, {L_TAB}')
    a('v_lshlrev_b32 v45, 3, v44')
    a('v_lshl_add_u32 v45, v41, 2, v45')
    a('v_lshlrev_b32 v46, 2, v44')
    a('v_add_u32 v46, 256, v46')
    a('v_cmp_eq_u32 vcc, 2, v41')
    a('v_cndmask_b32 v45, v45, v46, vcc')
    a('v_add_u32 v46, 2, v45')
    a('v_lshlrev_b32 v47, 1, v44')
    a('v_add_u32 v48, 384, v47')
    a('v_add_u32 v47, 448, v47')
    a('v_cmp_eq_u32 vcc, 3, v41')
    a('v_cndmask_b32 v45, v45, v48, vcc')
    a('v_cndmask_b32 v46, v46, v47, vcc')
    a(f'v_lshl_add_u32 v45, v45, 2, s{S_T+12}')
    a(f'v_lshl_add_u32 v46, v46, 2, s{S_T+12}')
    a('v_lshlrev_b32 v47, 7, v41')
    a('v_add_u32 v47, v47, v44')
    a('v_add_u32 v47, 512, v47')
    a(f'v_lshl_add_u32 v47, v47, 2, s{S_T+12}')
    a.barrier()
    stamp(2)
    KF = 128
    def kread(k):
        b = KF + (k % 8) * 8
        a(f'ds_read_b128 v[{b}:{b+3}], v42 offset:{k*64}')
        a(f'ds_read_b128 v[{b+4}:{b+7}], v43 offset:{k*64}')
    for k in range(6): kread(k)
    for k in range(16):
        b = KF + (k % 8) * 8
        a(f'v_mfma_f32_16x16x32_bf16 v[120:123], v[{b}:{b+3}], v[{b+4}:{b+7}], {"0" if k == 0 else "v[120:123]"}')
        if k + 6 < 16: kread(k + 6)
    a('v_lshlrev_b32 v50, 2, v1')
    a(f'v_add_u32 v50, {L_MP}, v50')
    a(f'ds_read_b32 v51, v50')
    a('v_mov_b32 v52, 0')
    a(f'v_mov_b32 v53, {L_TAB + 767*4}')
    a(f'ds_write_b32 v53, v52')
    a(f'ds_write_b32 v53, v52 offset:3072')
    st = a.snap()
    a(f's_cmp_lg_u32 s{S_T+10}, 0')
    a('s_cbranch_scc1 L_tab1')
    a('ds_write_b64 v45, v[120:121]')
    a('ds_write_b64 v46, v[122:123]')
    a('s_branch L_tab2')
    a.label('L_tab1')
    a.restore(st)
    a('s_mov_b64 exec, 0x1ffff')
    a('ds_write_b32 v47, v120')
    a('s_mov_b64 exec, 0xffff')
    for r in range(1, 4):
        a(f'ds_write_b32 v47, v{120+r} offset:{128*r}')
    a('s_mov_b64 exec, -1')
    a.label('L_tab2')
    a.force_wait(lg=0)
    a('v_add_f32_dpp v51, v51, v51 row_ror:8 row_mask:0xf bank_mask:0xf')
    a('v_mov_b32 v52, v51')
    a('v_permlane16_swap_b32 v51, v52')
    a('v_add_f32 v51, v51, v52')
    a('v_mov_b32 v52, v51')
    a('v_permlane32_swap_b32 v51, v52')
    a('v_add_f32 v51, v51, v52')
    a('v_cvt_pk_bf16_f32 v51, v51, v51')
    a('v_lshlrev_b32 v51, 16, v51')
    a('v_add_f32 v52, 1.0, v51')
    a('v_cvt_pk_bf16_f32 v52, v52, v52')
    a('v_lshlrev_b32 v52, 16, v52')
    a(f'v_readlane_b32 s{S_SA0}, v51, 0')
    a(f'v_readlane_b32 s{S_SA1}, v51, 1')
    a(f'v_readlane_b32 s{S_CA0}, v52, 2')
    a(f'v_readlane_b32 s{S_CA1}, v52, 3')
    a(f'v_readlane_b32 s{S_GA}, v51, 4')
    a(f'v_readlane_b32 s{S_T+9}, v51, 5')
    a(f's_lshl_b32 s{S_T+10}, s{S_DK}, 16')
    a(f's_and_b32 s{S_DK}, s{S_DK}, 0xffff0000')
    a(f's_cmp_ge_u32 s{S_WAVE}, 4')
    a(f's_cselect_b32 s{S_GA}, s{S_T+9}, s{S_GA}')
    a(f's_cselect_b32 s{S_DK}, s{S_DK}, s{S_T+10}')
    a.barrier()
    stamp(3)
    if debug:
        a('v_lshlrev_b32 v50, 4, v0')
        a(f'v_min_u32 v50, {6144-16}, v50')
        a(f'v_add_u32 v51, {L_TAB}, v50')
        a(f'ds_read_b128 v[52:55], v51')
        a(f's_mul_i32 s{S_T+9}, s{S_D0}, 3072')
        a(f's_add_u32 s{S_T+9}, s{S_T+9}, {WS_DUMP}')
        a(f'buffer_store_dwordx4 v[52:55], v50, {WSR}, s{S_T+9} offen')
    EV = 60
    for t in range(15):
        a(f'ds_read_b32 v{EV+t}, v{GA+t}')
    a('v_and_b32 v50, 255, v0')
    a('v_lshlrev_b32 v50, 4, v50')
    a(f's_cmp_ge_u32 s{S_WAVE}, 4')
    a(f's_cselect_b32 s{S_T+9}, {L_KC + KC_CH + 48}, {L_KC + 48}')
    a(f'v_add_u32 v50, s{S_T+9}, v50')
    a('v_mov_b32 v56, 0'); a('v_mov_b32 v57, 0'); a('v_mov_b32 v58, 0'); a('v_mov_b32 v59, 0')
    a('v_and_b32 v51, 3, v1')
    a('v_min_u32 v51, 2, v51')
    a('v_lshrrev_b32 v52, 2, v1')
    a(f'v_mul_u32_u24 v52, {KC_COPY}, v52')
    a('v_lshl_add_u32 v51, v51, 4, v52')
    a(f'ds_write_b128 v51, v[56:59] offset:{L_KC}')
    a('v_and_b32 v51, 15, v1')
    a('v_min_u32 v51, 14, v51')
    a('v_lshrrev_b32 v52, 4, v1')
    a(f'v_mul_u32_u24 v52, {U_PL}, v52')
    a('v_lshl_add_u32 v51, v51, 4, v52')
    a(f'v_add_u32 v51, {L_U}, v51')
    a(f'ds_write_b128 v51, v[56:59]')
    a(f'ds_write_b128 v51, v[56:59] offset:{U_CH}')
    D0_, D1_, X0_, X1_ = 76, 83, 90, 97
    for t in range(0, 6): a(f'v_cvt_pk_bf16_f32 v{76+t}, v{EV+2*t}, v{EV+2*t+1}')
    a(f'ds_write_b128 v50, v[76:79] offset:{7*KC_COPY}')
    a(f'ds_write_b128 v50, v[78:81] offset:{3*KC_COPY}')
    for t in range(1, 7): a(f'v_cvt_pk_bf16_f32 v{83+t}, v{EV+2*t}, v{EV+2*t+1}')
    a(f'ds_write_b128 v50, v[84:87] offset:{5*KC_COPY}')
    a(f'ds_write_b128 v50, v[86:89] offset:{1*KC_COPY}')
    for t in range(0, 6): a(f'v_cvt_pk_bf16_f32 v{90+t}, v{EV+2*t+1}, v{EV+2*t+2}')
    a(f'ds_write_b128 v50, v[90:93] offset:{6*KC_COPY}')
    a(f'ds_write_b128 v50, v[92:95] offset:{2*KC_COPY}')
    for t in range(1, 7): a(f'v_cvt_pk_bf16_f32 v{115+t}, v{EV+2*t+1}, v{EV+2*t+2}')
    a(f'ds_write_b128 v50, v[116:119] offset:{4*KC_COPY}')
    a(f'ds_write_b128 v50, v[118:121] offset:{0*KC_COPY}')
    stamp(4)
    a('v_lshrrev_b32 v40, 3, v0')
    a('v_bfe_u32 v41, v0, 1, 2')
    a('v_and_b32 v42, 1, v0')
    a('v_lshlrev_b32 v42, 3, v42')
    a('v_lshl_add_u32 v42, v40, 4, v42')
    a(f'v_mul_u32_u24 v43, {U_PL}, v41')
    a(f'v_add3_u32 v43, v43, v42, {0}')
    a(f'v_add_u32 v43, {L_U + 15*16}, v43')
    a(f'v_lshl_add_u32 v44, v41, 10, v42')
    a(f'v_add_u32 v44, {L_XL}, v44')
    a(f's_mov_b32 s{S_T+9}, 0x05040100')
    a(f's_mov_b32 s{S_T+10}, 0x07060302')
    a(f'v_perm_b32 v46, v19, v18, s{S_T+9}')
    a(f'v_perm_b32 v47, v21, v20, s{S_T+9}')
    a(f'v_perm_b32 v48, v19, v18, s{S_T+10}')
    a(f'v_perm_b32 v49, v21, v20, s{S_T+10}')
    a(f'ds_write_b64 v44, v[46:47]')
    a(f'ds_write_b64 v44, v[48:49] offset:{XL_CH}')
    for e in range(4):
        a(f'v_lshlrev_b32 v{60+e}, 16, v{18+e}')
        a(f'v_and_b32 v{64+e}, 0xffff0000, v{18+e}')
    a('v_lshlrev_b32 v45, 5, v0')
    a(f's_mov_b32 s{S_T+9}, {WS_ST1}')
    def issue():
        a(f'buffer_load_dwordx4 v[68:71], v45, {WSR}, s{S_T+9} offen sc1')
        a(f'buffer_load_dwordx4 v[72:75], v45, {WSR}, s{S_T+9} offen offset:16 sc1')
    def check():
        a(f'v_xor_b32 v76, s{S_TAG}, v69')
        a(f'v_xor_b32 v77, s{S_TAG}, v71')
        a(f'v_xor_b32 v78, s{S_TAG}, v73')
        a(f'v_xor_b32 v79, s{S_TAG}, v75')
        a('v_or3_b32 v76, v76, v77, v78')
        a('v_or_b32 v76, v76, v79')
        a('v_cmp_ne_u32 vcc, 0, v76')
    poll(issue, check)
    stamp(5)
    for e in range(4):
        g = 68 + 2 * e
        a(f'v_and_b32 v{76+e}, 0xffff0000, v{g}')
        a(f'v_lshlrev_b32 v{g}, 16, v{g}')
        a(f'v_rcp_f32 v{76+e}, v{76+e}')
    for e in range(4):
        g = 68 + 2 * e
        a(f'v_sub_f32 v{60+e}, v{60+e}, v{g}')
        a(f'v_sub_f32 v{64+e}, v{64+e}, v{g}')
    a(f'v_mov_b32 v80, s{S_SA0}')
    a(f'v_mov_b32 v81, s{S_SA1}')
    for e in range(4):
        a(f'v_mul_f32 v{60+e}, v{60+e}, v{76+e}')
        a(f'v_mul_f32 v{64+e}, v{64+e}, v{76+e}')
    for e in range(4):
        a(f'v_fma_f32 v{60+e}, v{60+e}, s{S_CA0}, v80')
        a(f'v_fma_f32 v{64+e}, v{64+e}, s{S_CA1}, v81')
    a('v_cvt_pk_bf16_f32 v46, v60, v61')
    a('v_cvt_pk_bf16_f32 v47, v62, v63')
    a('v_cvt_pk_bf16_f32 v48, v64, v65')
    a('v_cvt_pk_bf16_f32 v49, v66, v67')
    a(f'ds_write_b64 v43, v[46:47]')
    a(f'ds_write_b64 v43, v[48:49] offset:{U_CH}')
    a(f's_lshr_b32 s{S_T+9}, s{S_WAVE}, 2')
    a(f's_bfe_u32 s{S_T+10}, s{S_WAVE}, 0x10001')
    a(f's_and_b32 s{S_T+11}, s{S_WAVE}, 1')
    a('v_and_b32 v40, 15, v1')
    a('v_lshrrev_b32 v41, 4, v1')
    a(f's_mul_i32 s{S_T+12}, s{S_T+9}, {U_CH}')
    a(f's_lshl_b32 s{S_T+13}, s{S_T+10}, 4')
    a(f's_sub_u32 s{S_T+12}, s{S_T+12}, s{S_T+13}')
    a(f's_add_u32 s{S_T+12}, s{S_T+12}, {L_U + 16}')
    a(f'v_mul_u32_u24 v42, {U_PL}, v41')
    a('v_lshl_add_u32 v42, v40, 4, v42')
    a(f'v_add_u32 v43, s{S_T+12}, v42')
    a(f's_mul_i32 s{S_T+12}, s{S_T+9}, {KC_CH}')
    a(f's_mul_i32 s{S_T+13}, s{S_T+11}, {4*KC_COPY}')
    a(f's_add_u32 s{S_T+12}, s{S_T+12}, s{S_T+13}')
    a(f's_lshl_b32 s{S_T+13}, s{S_T+10}, 6')
    a(f's_add_u32 s{S_T+12}, s{S_T+12}, s{S_T+13}')
    a(f's_add_u32 s{S_T+12}, s{S_T+12}, {L_KC + 48}')
    a('v_and_b32 v44, 3, v40')
    a(f'v_mul_u32_u24 v44, {KC_COPY}, v44')
    a('v_lshrrev_b32 v45, 2, v40')
    a('v_sub_u32 v45, v45, v41')
    a('v_lshl_add_u32 v44, v45, 4, v44')
    a(f'v_add_u32 v44, s{S_T+12}, v44')
    a.barrier()
    stamp(6)
    CF = 128; CACC = 200
    def cread(it):
        b = CF + (it & 1) * 32
        order = [('F', 0), ('G', 0), ('G', 1), ('G', 2), ('G', 3), ('F', 1), ('F', 2), ('F', 3)]
        out = []
        for k, i in order:
            if k == 'F':
                out.append(f'ds_read_b128 v[{b+4*i}:{b+4*i+3}], v44 offset:{(8*it + 64*i)*16}')
            else:
                out.append(f'ds_read_b128 v[{b+16+4*i}:{b+16+4*i+3}], v43 offset:{(16*i + 14 - 2*it)*16}')
        return out
    for o in cread(0): a(o)
    for it in range(8):
        b = CF + (it & 1) * 32
        nxt = cread(it + 1) if it < 7 else []
        k = 0
        for e in range(4):
            for i in range(e, 4):
                c = '0' if (it == 0 and e == 0) else f'v[{CACC+4*i}:{CACC+4*i+3}]'
                a(f'v_mfma_f32_16x16x32_bf16 v[{CACC+4*i}:{CACC+4*i+3}], v[{b+4*e}:{b+4*e+3}], v[{b+16+4*(i-e)}:{b+16+4*(i-e)+3}], {c}')
                if k < len(nxt): a(nxt[k]); k += 1
    stamp(7)
    a(f's_lshl_b32 s{S_T+12}, s{S_T+9}, 14')
    a(f's_add_u32 s{S_T+12}, s{S_T+12}, {L_EX}')
    a(f's_and_b32 s{S_T+13}, s{S_WAVE}, 3')
    a(f's_lshl_b32 s{S_T+14}, s{S_T+13}, 10')
    a(f's_add_u32 s{S_T+14}, s{S_T+14}, s{S_T+12}')
    a(f'v_add_u32 v45, s{S_T+14}, v2')
    a(f's_lshl_b32 s{S_T+14}, s{S_T+13}, 12')
    a(f's_add_u32 s{S_T+14}, s{S_T+14}, s{S_T+12}')
    a(f'v_add_u32 v46, s{S_T+14}, v2')
    a(f's_mul_i32 s{S_T+12}, s{S_T+9}, {U_CH}')
    a(f's_lshl_b32 s{S_T+14}, s{S_T+13}, 8')
    a(f's_add_u32 s{S_T+12}, s{S_T+12}, s{S_T+14}')
    a(f's_add_u32 s{S_T+12}, s{S_T+12}, {L_U + 15*16}')
    a(f'v_add_u32 v47, s{S_T+12}, v42')
    a(f'ds_read_b128 v[60:63], v47')
    a(f's_lshl_b32 s{S_T+12}, s{S_T+9}, 12')
    a(f's_add_u32 s{S_T+12}, s{S_T+12}, s{S_T+14}')
    a(f's_add_u32 s{S_T+12}, s{S_T+12}, {L_XL}')
    a('v_lshlrev_b32 v48, 4, v40')
    a('v_lshl_add_u32 v48, v41, 10, v48')
    a(f'v_add_u32 v48, s{S_T+12}, v48')
    a(f'ds_read_b128 v[64:67], v48')
    for i in range(4):
        a(f'ds_write_b128 v45, v[{CACC+4*i}:{CACC+4*i+3}] offset:{4096*i}')
    for i in range(4):
        a(f'v_lshlrev_b32 v{84+2*i}, 16, v{60+i}')
        a(f'v_and_b32 v{85+2*i}, 0xffff0000, v{60+i}')
        a(f'v_lshlrev_b32 v{92+2*i}, 16, v{64+i}')
        a(f'v_and_b32 v{93+2*i}, 0xffff0000, v{64+i}')
    a(f's_add_u32 s{S_T+12}, s{S_D0}, s{S_T+9}')
    a(f's_lshl_b32 s{S_T+12}, s{S_T+12}, 12')
    a(f's_lshl_b32 s{S_T+14}, s{S_T+13}, 10')
    a(f's_add_u32 s{S_T+12}, s{S_T+12}, s{S_T+14}')
    a(f's_add_u32 s{S_T+12}, s{S_T+12}, {WS_X1T}')
    a('v_lshlrev_b32 v49, 6, v40')
    a('v_lshl_add_u32 v49, v41, 4, v49')
    a.barrier()
    for i in range(4):
        a(f'ds_read_b128 v[{68+4*i}:{71+4*i}], v46 offset:{1024*i}')
    for r in range(4):
        a(f'v_fma_f32 v{84+r}, v{84+r}, s{S_DK}, v{68+r}')
    for r in range(4):
        a(f'v_fma_f32 v{88+r}, v{88+r}, s{S_DK}, v{72+r}')
    for r in range(4):
        a(f'v_add_f32 v{84+r}, v{84+r}, v{76+r}')
    for r in range(4):
        a(f'v_add_f32 v{88+r}, v{88+r}, v{80+r}')
    for r in range(8):
        a(f'v_fma_f32 v{92+r}, v{84+r}, s{S_GA}, v{92+r}')
    for i in range(4):
        a(f'v_cvt_pk_bf16_f32 v{60+i}, v{92+2*i}, v{93+2*i}')
    a(f'buffer_store_dwordx4 v[60:63], v49, {WSR}, s{S_T+12} offen sc1')
    a.force_wait(vm=0)
    a.barrier()
    stamp(8)
    st = a.snap()
    a(f's_cmp_lg_u32 s{S_WAVE}, 0')
    a('s_cbranch_scc1 L_s2a')
    a('v_mov_b32 v40, 1')
    a(f's_and_b32 s{S_T+9}, s2, 15')
    a(f's_lshl_b32 s{S_T+9}, s{S_T+9}, 8')
    a(f's_add_u32 s{S_T+9}, s{S_T+9}, {CNT_S2}')
    a('v_mov_b32 v41, 0')
    a('s_mov_b64 exec, 1')
    a(f'buffer_atomic_add v40, v41, {WSR}, s{S_T+9} offen sc1')
    a(f's_lshl_b32 s{S_T+9}, s{S_X8}, 8')
    a(f's_add_u32 s{S_T+9}, s{S_T+9}, {CNT_W}')
    poll(lambda: a(f'buffer_load_dword v42, v41, {WSR}, s{S_T+9} offen sc1'),
         lambda: a('v_cmp_ne_u32 vcc, 28, v42'))
    a('s_mov_b64 exec, -1')
    a.label('L_s2a')
    a.restore(st)
    a('s_barrier')
    stamp(9)
    if stop <= 2:
        stamp_flush()
        a('s_endpgm')
    RING0 = 112; NSLOT = 35
    def slot(i): return RING0 + 4 * i
    a(f's_lshl_b32 s{S_T}, s{S_S}, 3')
    a(f's_add_u32 s{S_T}, s{S_T}, s{S_WAVE}')
    a(f's_mul_i32 s{S_T}, s{S_T}, {29*2048}')
    a(f's_add_u32 s{S_T}, s{S_T}, {WS_W1F}')
    w1_issued = [0]
    def issue_w1():
        n = w1_issued[0]
        if n >= 58: return False
        r = slot(n % NSLOT)
        if n % 4 == 0 and n > 0:
            a(f's_add_u32 s{S_T}, s{S_T}, 4096')
        a(f'buffer_load_dwordx4 v[{r}:{r+3}], v2, {WSR}, s{S_T} offen offset:{(n % 4)*1024} sc1')
        w1_issued[0] += 1
        return True
    for _ in range(NSLOT): issue_w1()
    TB = S_T + 1
    PB = S_T + 5
    for i in range(4):
        a(f's_lshl_b32 s{S_T+9}, s{S_S}, 2')
        a(f's_add_u32 s{S_T+9}, s{S_T+9}, {4 + 8*i}')
        a(f's_add_u32 s{S_T+9}, s{S_T+9}, s{S_WAVE}')
        a(f's_sub_u32 s{S_T+10}, s{S_T+9}, 28')
        a(f's_cmp_ge_u32 s{S_T+9}, 28')
        a(f's_cselect_b32 s{S_T+9}, s{S_T+10}, s{S_T+9}')
        a(f's_sub_u32 s{S_T+10}, s{S_T+9}, 28')
        a(f's_cmp_ge_u32 s{S_T+9}, 28')
        a(f's_cselect_b32 s{S_T+9}, s{S_T+10}, s{S_T+9}')
        a(f's_mul_i32 s{S_T+10}, s{S_S}, 28')
        a(f's_add_u32 s{S_T+10}, s{S_T+10}, s{S_T+9}')
        a(f's_lshl_b32 s{S_T+10}, s{S_T+10}, 13')
        a(f's_add_u32 s{TB+i}, s{S_T+10}, {WS_WDF}')
        a(f's_mul_i32 s{S_T+10}, s{S_RT}, 7')
        a(f's_lshr_b32 s{S_T+11}, s{S_T+9}, 2')
        a(f's_add_u32 s{S_T+10}, s{S_T+10}, s{S_T+11}')
        a(f's_mul_i32 s{S_T+10}, s{S_T+10}, 7')
        a(f's_add_u32 s{S_T+10}, s{S_T+10}, s{S_S}')
        a(f's_lshl_b32 s{S_T+10}, s{S_T+10}, 2')
        a(f's_and_b32 s{S_T+11}, s{S_T+9}, 3')
        a(f's_add_u32 s{S_T+10}, s{S_T+10}, s{S_T+11}')
        a(f's_lshl_b32 s{S_T+10}, s{S_T+10}, 11')
        a(f's_add_u32 s{PB+i}, s{S_T+10}, {WS_PART}')
    a('v_lshrrev_b32 v4, 3, v1')
    a('v_and_b32 v5, 7, v1')
    a('v_and_b32 v6, 2, v4')
    a('v_lshlrev_b32 v6, 1, v6')
    a('v_xor_b32 v5, v5, v6')
    a('v_lshlrev_b32 v5, 4, v5')
    a('v_lshl_add_u32 v4, v4, 12, v5')
    a('v_bfe_u32 v5, v1, 2, 2')
    a('v_lshrrev_b32 v6, 5, v1')
    a('v_lshl_add_u32 v6, v6, 3, v5')
    a('v_lshlrev_b32 v6, 7, v6')
    a('v_bfe_u32 v7, v1, 4, 1')
    a('v_and_b32 v5, 2, v5')
    a('v_xor_b32 v7, v7, v5')
    a('v_lshl_add_u32 v6, v7, 5, v6')
    a('v_and_b32 v7, 3, v1')
    a('v_lshl_add_u32 v6, v7, 3, v6')
    a('v_xor_b32 v7, 64, v6')
    a('v_mov_b32 v8, 0'); a('v_mov_b32 v9, 0'); a('v_mov_b32 v10, 0'); a('v_mov_b32 v11, 0')
    a('v_mov_b32 v12, 0x3f803f80')
    st = a.snap()
    a(f's_cmp_lg_u32 s{S_WAVE}, 0')
    a('s_cbranch_scc1 L_s2b')
    a('v_lshlrev_b32 v13, 8, v1')
    a(f's_mov_b32 s{S_T+9}, {CNT_S2}')
    a('s_mov_b64 exec, 0xffff')
    poll(lambda: a(f'buffer_load_dword v14, v13, {WSR}, s{S_T+9} offen sc1'),
         lambda: a('v_cmp_ne_u32 vcc, 14, v14'))
    a('s_mov_b64 exec, -1')
    a('s_cmp_lg_u32 s2, 0')
    a('s_cbranch_scc1 L_s2b')
    a(f'v_mov_b32 v14, s{S_TAG}')
    a('v_mov_b32 v13, 0')
    a('s_mov_b64 exec, 1')
    a(f'buffer_store_dword v14, v13, {WSR}, 0 offen sc1')
    a.force_wait(vm=0)
    a('s_mov_b64 exec, -1')
    a.label('L_s2b')
    a.restore(st)
    a('s_barrier')
    stamp(10)
    a(f's_lshl_b32 s{S_T+9}, s{S_WAVE}, 15')
    a(f's_lshl_b32 s{S_T+10}, s{S_RT}, 7')
    a(f's_add_u32 s{S_T+9}, s{S_T+9}, s{S_T+10}')
    a(f's_add_u32 s{S_T+9}, s{S_T+9}, {WS_X1T}')
    a(f's_lshl_b32 s{S_T+10}, s{S_WAVE}, 10')
    for i in range(7):
        a(f's_mov_b32 m0, s{S_T+10}')
        a(f'buffer_load_dwordx4 v4, {WSR}, s{S_T+9} offen sc1 lds')
        if i < 6:
            a(f's_add_u32 s{S_T+9}, s{S_T+9}, {8*32768}')
            a(f's_add_u32 s{S_T+10}, s{S_T+10}, 8192')
    a.force_wait(vm=0)
    a('s_barrier')
    stamp(11)
    ACC = 32; XF = 96
    def xread(k):
        b = XF + (k & 1) * 8
        return [f'ds_read_b64_tr_b16 v[{b+4*lt+2*h}:{b+4*lt+2*h+1}], v{6+lt} offset:{L_XT + k*2048 + h*512}' for lt in range(2) for h in range(2)]
    wd_list = [(i, kap) for i in range(4) for kap in range(8)]
    wd_slot = {}
    wd_next = [0]
    free_wd = []
    def issue_wd():
        if wd_next[0] >= len(wd_list) or not free_wd: return False
        i, kap = wd_list[wd_next[0]]
        r = free_wd.pop(0)
        wd_slot[(i, kap)] = r
        if kap == 4:
            a(f's_add_u32 s{TB+i}, s{TB+i}, 4096')
        a(f'buffer_load_dwordx4 v[{r}:{r+3}], v2, {WSR}, s{TB+i} offen offset:{(kap % 4)*1024} sc1')
        wd_next[0] += 1
        return True
    for o in xread(0): a(o)
    for k in range(28):
        b = XF + (k & 1) * 8
        nx = xread(k + 1) if k < 27 else []
        for m in range(2):
            r = slot((2 * k + m) % NSLOT)
            for lt in range(2):
                acc = ACC + 32 * m + 16 * lt
                c = '0' if k == 0 else f'v[{acc}:{acc+15}]'
                a(f'v_mfma_f32_32x32x16_bf16 v[{acc}:{acc+15}], v[{r}:{r+3}], v[{b+4*lt}:{b+4*lt+3}], {c}')
                if nx: a(nx.pop(0))
            if not issue_w1():
                if r >= 176:
                    free_wd.append(r)
                issue_wd()
        st = a.snap()
        a(f's_cmp_lg_u32 s{S_WAVE}, {k & 7}')
        a(f's_cbranch_scc1 L_sk{k}')
        for j in range(4):
            for lt in range(2):
                a(f'v_dot2c_f32_bf16 v{8+lt}, v{b+4*lt+j}, v12')
                a(f'v_dot2c_f32_bf16 v{10+lt}, v{b+4*lt+j}, v{b+4*lt+j}')
        a.label(f'L_sk{k}')
        a.restore(st)
    stamp(12)
    a('s_nop 3')
    a('v_permlane32_swap_b32 v8, v9')
    a('v_permlane32_swap_b32 v10, v11')
    a('v_add_f32 v8, v8, v9')
    a('v_add_f32 v9, v10, v11')
    a(f's_lshl_b32 s{S_T+9}, s{S_WAVE}, 9')
    a(f's_add_u32 s{S_T+9}, s{S_T+9}, {L_SP}')
    a(f'v_lshlrev_b32 v13, 3, v1')
    a(f'v_add_u32 v14, s{S_T+9}, v13')
    a('ds_write_b64 v14, v[8:9]')
    a(f'v_add_u32 v13, {L_SP}, v13')
    a.barrier()
    for w in range(8):
        a(f'ds_read_b64 v[{96+2*w}:{97+2*w}], v13 offset:{512*w}')
    a('v_pk_add_f32 v[96:97], v[96:97], v[98:99]')
    a('v_pk_add_f32 v[100:101], v[100:101], v[102:103]')
    a('v_pk_add_f32 v[104:105], v[104:105], v[106:107]')
    a('v_pk_add_f32 v[108:109], v[108:109], v[110:111]')
    a('v_pk_add_f32 v[96:97], v[96:97], v[100:101]')
    a('v_pk_add_f32 v[104:105], v[104:105], v[108:109]')
    a('v_pk_add_f32 v[96:97], v[96:97], v[104:105]')
    a(f'v_mul_f32 v96, {fhex(1/448)}, v96')
    a(f'v_mul_f32 v97, {fhex(1/448)}, v97')
    a('v_fma_f32 v97, -v96, v96, v97')
    a('v_max_f32 v97, 0, v97')
    a('v_cvt_pk_bf16_f32 v97, v97, v97')
    a('v_lshlrev_b32 v97, 16, v97')
    a(f'v_add_f32 v97, {fhex(1e-5)}, v97')
    a('v_cvt_pk_bf16_f32 v97, v97, v97')
    a('v_lshlrev_b32 v97, 16, v97')
    a('v_sqrt_f32 v97, v97')
    a('v_cvt_pk_bf16_f32 v98, -v96, -v96')
    a('v_cvt_pk_bf16_f32 v99, v97, v97')
    a('v_and_b32 v8, 0xffff0000, v99')
    a('v_mul_f32 v8, v8, v8')
    a('v_rcp_f32 v8, v8')
    a('v_cmp_gt_u32 vcc, 32, v1')
    a('v_cndmask_b32 v100, 0, v98, vcc')
    a('v_cndmask_b32 v101, 0, v99, vcc')
    a('v_cndmask_b32 v102, 0, v98, vcc')
    a('v_cndmask_b32 v103, 0, v99, vcc')
    a('v_cndmask_b32 v104, v98, 0, vcc')
    a('v_cndmask_b32 v105, v99, 0, vcc')
    a('v_cndmask_b32 v106, v98, 0, vcc')
    a('v_cndmask_b32 v107, v99, 0, vcc')
    a('v_mov_b32 v9, v8')
    for m in range(2):
        r = slot((56 + m) % NSLOT)
        for lt in range(2):
            acc = ACC + 32 * m + 16 * lt
            a(f'v_mfma_f32_32x32x16_bf16 v[{acc}:{acc+15}], v[{r}:{r+3}], v[{100+4*lt}:{103+4*lt}], v[{acc}:{acc+15}]')
        free_wd.append(r)
    a('v_permlane32_swap_b32 v8, v9')
    while issue_wd(): pass
    a('v_bfe_u32 v13, v1, 4, 1')
    a('v_lshlrev_b32 v13, 10, v13')
    a('v_lshrrev_b32 v14, 5, v1')
    a('v_lshl_add_u32 v13, v14, 8, v13')
    a('v_and_b32 v14, 15, v1')
    a('v_lshl_add_u32 v13, v14, 4, v13')
    a(f's_lshl_b32 s{S_T+9}, s{S_WAVE}, 12')
    a(f's_add_u32 s{S_T+9}, s{S_T+9}, {L_HH}')
    a(f'v_add_u32 v13, s{S_T+9}, v13')
    for lt in range(2):
        g = ACC + 16 * lt; u = ACC + 32 + 16 * lt
        for i in range(0, 16, 2):
            a(f'v_pk_mul_f32 v[{g+i}:{g+i+1}], v[{g+i}:{g+i+1}], v[{u+i}:{u+i+1}]')
        for i in range(0, 16, 2):
            a(f'v_pk_mul_f32 v[{g+i}:{g+i+1}], v[{g+i}:{g+i+1}], v[8:9] op_sel:[0,{lt}] op_sel_hi:[1,{lt}]')
        for i in range(8):
            a(f'v_cvt_pk_bf16_f32 v{u+i}, v{g+2*i}, v{g+2*i+1}')
        a(f'ds_write_b128 v13, v[{u}:{u+3}] offset:{2048*lt}')
        a(f'ds_write_b128 v13, v[{u+4}:{u+7}] offset:{2048*lt + 512}')
    a(f'v_add_u32 v14, {L_HH}, v2')
    a.barrier()
    stamp(13)
    HF = 32
    for kap in range(8):
        for u in range(4):
            r = HF + (kap * 4 + u) * 4
            a(f'ds_read_b128 v[{r}:{r+3}], v14 offset:{(kap*4+u)*1024}')
    A2 = [160, 16]
    for i in range(4):
        if i == 3:
            a.force_wait(vm=0) if False else None
            stg = a.snap()
        acc = A2[i & 1]
        if i == 3:
            pass
        def tile(i, acc):
            for kap in range(8):
                r = wd_slot[(i, kap)]
                for u in range(4):
                    h = HF + (kap * 4 + u) * 4
                    c = '0' if kap == 0 else f'v[{acc+4*u}:{acc+4*u+3}]'
                    a(f'v_mfma_f32_16x16x32_bf16 v[{acc+4*u}:{acc+4*u+3}], v[{r}:{r+3}], v[{h}:{h+3}], {c}')
                free_wd.append(r)
                issue_wd()
                if kap == 2 and i > 0:
                    publish(i - 1)
        def publish(i):
            acc = A2[i & 1]
            for k in range(8):
                a(f'v_cvt_pk_bf16_f32 v{8+k}, v{acc+2*k}, v{acc+2*k+1}')
            a(f'buffer_store_dwordx4 v[8:11], v2, {WSR}, s{PB+i} offen sc1')
            a(f'buffer_store_dwordx4 v[12:15], v2, {WSR}, s{PB+i} offen offset:1024 sc1')
        if i < 3:
            tile(i, acc)
        else:
            publish(2)
            a.force_wait(vm=0)
            a('s_barrier')
            stamp(14)
            a(f's_cmp_ge_u32 s{S_WAVE}, 4')
            a('s_cbranch_scc1 L_end')
            st = a.snap()
            a(f's_lshl_b32 s{S_T+9}, s{S_RT}, 8')
            a(f's_add_u32 s{S_T+9}, s{S_T+9}, {CNT_G}')
            a('v_mov_b32 v9, 0')
            a(f's_cmp_lg_u32 s{S_WAVE}, 0')
            a('s_cbranch_scc1 L_g1')
            a('v_mov_b32 v8, 1')
            a('s_mov_b64 exec, 1')
            a(f'buffer_atomic_add v8, v9, {WSR}, s{S_T+9} offen sc1')
            a('s_mov_b64 exec, -1')
            a.label('L_g1')
            for kap in range(8):
                r = wd_slot[(3, kap)]
                for u in range(4):
                    h = HF + (kap * 4 + u) * 4
                    c = '0' if kap == 0 else f'v[{acc+4*u}:{acc+4*u+3}]'
                    a(f'v_mfma_f32_16x16x32_bf16 v[{acc+4*u}:{acc+4*u+3}], v[{r}:{r+3}], v[{h}:{h+3}], {c}')
    acc = A2[1]
    a('v_bfe_u32 v4, v1, 2, 2')
    a('v_lshrrev_b32 v5, 4, v1')
    a('v_lshl_add_u32 v6, v5, 2, v4')
    a('v_lshlrev_b32 v6, 7, v6')
    a('v_and_b32 v4, 2, v4')
    a('v_lshl_add_u32 v6, v4, 5, v6')
    a('v_and_b32 v4, 3, v1')
    a('v_lshl_add_u32 v6, v4, 3, v6')
    a(f's_lshl_b32 s{S_T+10}, s{S_S}, 2')
    a(f's_add_u32 s{S_T+10}, s{S_T+10}, s{S_WAVE}')
    a(f's_lshl_b32 s{S_T+11}, s{S_T+10}, 11')
    a(f'v_add_u32 v6, s{S_T+11}, v6')
    a('v_xor_b32 v7, 64, v6')
    a(f'ds_read_b64_tr_b16 v[32:33], v6 offset:{L_XT}')
    a(f'ds_read_b64_tr_b16 v[34:35], v6 offset:{L_XT+32}')
    a(f'ds_read_b64_tr_b16 v[36:37], v7 offset:{L_XT}')
    a(f'ds_read_b64_tr_b16 v[38:39], v7 offset:{L_XT+32}')
    a(f's_lshl_b32 s{S_T+11}, s{S_T+10}, 6')
    a(f's_add_u32 s{S_T+11}, s{S_T+11}, {WS_GB}')
    a('v_lshlrev_b32 v10, 4, v5')
    def issue():
        a(f'buffer_load_dwordx4 v[40:43], v10, {WSR}, s{S_T+11} offen sc1')
        a(f'buffer_load_dword v44, v9, {WSR}, s{S_T+9} offen sc1')
    def check():
        a(f'v_xor_b32 v45, s{S_TAG}, v41')
        a(f'v_xor_b32 v46, s{S_TAG}, v43')
        a(f'v_xor_b32 v47, 7, v44')
        a('v_or3_b32 v45, v45, v46, v47')
        a('v_cmp_ne_u32 vcc, 0, v45')
    poll(issue, check)
    stamp(15)
    a(f's_mul_i32 s{S_T+12}, s{S_RT}, 7')
    a(f's_add_u32 s{S_T+12}, s{S_T+12}, s{S_S}')
    a(f's_mul_i32 s{S_T+12}, s{S_T+12}, {7*4*2048}')
    a(f's_lshl_b32 s{S_T+13}, s{S_WAVE}, 11')
    a(f's_add_u32 s{S_T+12}, s{S_T+12}, s{S_T+13}')
    a(f's_add_u32 s{S_T+12}, s{S_T+12}, {WS_PART}')
    for j in range(6):
        a(f's_add_u32 s{S_T+13}, s{S_S}, {j+1}')
        a(f's_sub_u32 s{S_T+14}, s{S_T+13}, 7')
        a(f's_cmp_ge_u32 s{S_T+13}, 7')
        a(f's_cselect_b32 s{S_T+13}, s{S_T+14}, s{S_T+13}')
        a(f's_lshl_b32 s{S_T+13}, s{S_T+13}, 13')
        a(f's_add_u32 s{S_T+13}, s{S_T+13}, s{S_T+12}')
        a(f'buffer_load_dwordx4 v[{48+8*j}:{51+8*j}], v2, {WSR}, s{S_T+13} offen sc1')
        a(f'buffer_load_dwordx4 v[{52+8*j}:{55+8*j}], v2, {WSR}, s{S_T+13} offen offset:1024 sc1')
    a('v_lshlrev_b32 v96, 16, v40'); a('v_and_b32 v97, 0xffff0000, v40')
    a('v_lshlrev_b32 v98, 16, v42'); a('v_and_b32 v99, 0xffff0000, v42')
    for k in range(8):
        a(f'v_lshlrev_b32 v{100+2*k}, 16, v{32+k}')
        a(f'v_and_b32 v{101+2*k}, 0xffff0000, v{32+k}')
    a('v_and_b32 v4, 15, v1')
    a('v_mul_u32_u24 v4, 896, v4')
    a('v_lshl_add_u32 v4, v5, 3, v4')
    a(f's_mul_i32 s{S_T+13}, s{S_RT}, {64*896}')
    a(f's_lshl_b32 s{S_T+14}, s{S_T+10}, 5')
    a(f's_add_u32 s{S_T+13}, s{S_T+13}, s{S_T+14}')
    a(f's_mov_b32 s{SRD_A}, s{P_OUT}')
    a(f's_mov_b32 s{SRD_A+1}, s{P_OUT+1}')
    a(f's_mov_b32 s{SRD_A+2}, {2048*896}')
    for j in range(6):
        for k in range(8):
            r = 48 + 8 * j + k
            a(f'v_lshlrev_b32 v116, 16, v{r}')
            a(f'v_and_b32 v117, 0xffff0000, v{r}')
            a(f'v_pk_add_f32 v[{acc+2*k}:{acc+2*k+1}], v[{acc+2*k}:{acc+2*k+1}], v[116:117]')
    for k in range(8):
        gbp = 96 + 2 * (k & 1)
        a(f'v_pk_fma_f32 v[{100+2*k}:{101+2*k}], v[{acc+2*k}:{acc+2*k+1}], v[{gbp}:{gbp+1}], v[{100+2*k}:{101+2*k}]')
    for u in range(4):
        a(f'v_cvt_pk_bf16_f32 v{48+2*u}, v{100+4*u}, v{101+4*u}')
        a(f'v_cvt_pk_bf16_f32 v{49+2*u}, v{102+4*u}, v{103+4*u}')
        a(f'buffer_store_dwordx2 v[{48+2*u}:{49+2*u}], v4, s[{SRD_A}:{SRD_A+3}], s{S_T+13} offen')
        if u < 3: a(f's_add_u32 s{S_T+13}, s{S_T+13}, {16*896}')
    stamp(16)
    stamp_flush(True)
    a('s_endpgm')

    a.label('L_spare')
    a.restore(fork)
    SJ = S_D0
    a(f's_sub_u32 s{SJ}, s2, 224')
    a(f's_min_u32 s{S_T+4}, s{SJ}, 20')
    a(f's_lshl_b32 s{S_T+5}, s{S_T+4}, 6')
    a(f's_add_u32 s{S_T+5}, s{S_T+5}, {3*896}')
    a(f's_sub_u32 s{S_T+6}, s{S_T+4}, 14')
    a(f's_lshl_b32 s{S_T+6}, s{S_T+6}, 7')
    a(f's_add_u32 s{S_T+6}, s{S_T+6}, {5*896}')
    a(f's_cmp_lt_u32 s{S_T+4}, 14')
    a(f's_cselect_b32 s{S_T+5}, s{S_T+5}, s{S_T+6}')
    a(f's_cselect_b32 s{S_T+6}, {896 - 64}, 0')
    a('v_lshrrev_b32 v8, 3, v1')
    a('v_and_b32 v9, 7, v1')
    a(f's_mul_i32 s{S_T+7}, s{S_WAVE}, 56')
    a(f'v_add_u32 v8, s{S_T+7}, v8')
    a('v_lshlrev_b32 v10, 1, v8')
    for it in range(7):
        a(f'global_load_short_d16_hi v{16+it}, v10, s[{P_C}:{P_C+1}] offset:{16*it}')
    a('v_mul_u32_u24 v11, 5376, v8')
    a('v_lshl_add_u32 v11, v9, 4, v11')
    a('v_lshrrev_b32 v12, 2, v9')
    a(f'v_mul_lo_u32 v12, v12, s{S_T+6}')
    a(f'v_add3_u32 v11, v11, v12, s{S_T+5}')
    for it in range(7):
        a(f'global_load_dwordx4 v[{64+4*it}:{67+4*it}], v11, s[{P_WM}:{P_WM+1}]')
        if it < 6: a(f'v_add_u32 v11, {8*5376}, v11')
    JS, JM, JH, JK = S_RT, S_S, S_SA0, S_SA1
    a(f's_min_u32 s{S_T+8}, s{SJ}, 27')
    a(f's_lshr_b32 s{JS}, s{S_T+8}, 2')
    a(f's_bfe_u32 s{JM}, s{S_T+8}, 0x10001')
    a(f's_and_b32 s{JH}, s{S_T+8}, 1')
    a(f's_min_u32 s{JK}, s{S_WAVE}, 6')
    a(f's_lshl_b32 s{JK}, s{JK}, 1')
    a(f's_mul_i32 s{S_T+8}, s{JH}, 14')
    a(f's_add_u32 s{JK}, s{JK}, s{S_T+8}')
    a(f's_cmp_eq_u32 s{JM}, 0')
    a(f's_cselect_b32 s{S_T+10}, s{P_WG}, s{P_WU}')
    a(f's_cselect_b32 s{S_T+11}, s{P_WG+1}, s{P_WU+1}')
    a('v_lshrrev_b32 v13, 5, v1')
    a('v_and_b32 v14, 31, v1')
    a(f'v_mul_u32_u24 v15, {8*3584}, v13')
    a('v_lshl_add_u32 v15, v14, 4, v15')
    a(f's_mul_i32 s{S_T+8}, s{JK}, {16*3584}')
    a(f's_lshl_b32 s{S_T+9}, s{JS}, 9')
    a(f's_add_u32 s{S_T+8}, s{S_T+8}, s{S_T+9}')
    a(f'v_add_u32 v15, s{S_T+8}, v15')
    RW = 120
    stats_block(nyounger=14)
    for un in range(2):
        for j in range(8):
            r = RW + (un * 8 + j) * 4
            a(f'global_load_dwordx4 v[{r}:{r+3}], v15, s[{S_T+10}:{S_T+11}]')
            a(f'v_add_u32 v15, {3584 if j < 7 else 9*3584}, v15')
    for it in range(7):
        silu_bf16(16 + it, 16 + it, 24)
    for e in range(8): a(f'v_mov_b32 v{24+e}, 0')
    for it in range(7):
        for k in range(4):
            a(f'v_lshlrev_b32 v32, 16, v{64+4*it+k}')
            a(f'v_and_b32 v33, 0xffff0000, v{64+4*it+k}')
            a(f'v_fmac_f32 v{24+2*k}, v32, v{16+it}')
            a(f'v_fmac_f32 v{25+2*k}, v33, v{16+it}')
    for e in range(8):
        a(f'v_add_f32_dpp v{24+e}, v{24+e}, v{24+e} row_ror:8 row_mask:0xf bank_mask:0xf')
    for sw in ('v_permlane16_swap_b32', 'v_permlane32_swap_b32'):
        for e in range(8): a(f'v_mov_b32 v{32+e}, v{24+e}')
        for e in range(8): a(f'{sw} v{24+e}, v{32+e}')
        for e in range(8): a(f'v_add_f32 v{24+e}, v{24+e}, v{32+e}')
    a(f's_lshl_b32 s{S_T+8}, s{S_WAVE}, 8')
    a(f'v_lshl_add_u32 v32, v9, 5, s{S_T+8}')
    a('s_mov_b64 exec, 0xff')
    a('ds_write_b128 v32, v[24:27]')
    a('ds_write_b128 v32, v[28:31] offset:16')
    a('s_mov_b64 exec, -1')
    a.barrier()
    a('v_lshlrev_b32 v32, 2, v1')
    for w in range(8):
        a(f'ds_read_b32 v{24+w}, v32 offset:{256*w}')
    a('v_add_f32 v24, v24, v25'); a('v_add_f32 v26, v26, v27'); a('v_add_f32 v28, v28, v29'); a('v_add_f32 v30, v30, v31')
    a('v_add_f32 v24, v24, v26'); a('v_add_f32 v28, v28, v30'); a('v_add_f32 v24, v24, v28')
    a('v_cvt_pk_bf16_f32 v24, v24, v24')
    a('v_lshlrev_b32 v24, 16, v24')
    a('v_add_f32 v25, 1.0, v24')
    a('v_mov_b32 v27, v25')
    a('v_permlane32_swap_b32 v25, v27')
    a('v_cvt_pk_bf16_f32 v28, v27, v24')
    a('v_mov_b32_dpp v26, v24 quad_perm:[1,1,3,3] row_mask:0xf bank_mask:0xf')
    a('v_cvt_pk_bf16_f32 v30, v24, v26')
    a(f'v_mov_b32 v29, s{S_TAG}')
    a(f'v_mov_b32 v31, s{S_TAG}')
    st = a.snap()
    a(f's_cmp_lg_u32 s{S_WAVE}, 0')
    a('s_cbranch_scc1 L_gv2')
    a(f's_cmp_ge_u32 s{SJ}, 21')
    a('s_cbranch_scc1 L_gv2')
    a(f's_cmp_ge_u32 s{SJ}, 14')
    a('s_cbranch_scc1 L_gv1')
    a(f's_lshl_b32 s{S_T+8}, s{SJ}, 8')
    a(f's_add_u32 s{S_T+8}, s{S_T+8}, {WS_MG}')
    a('v_lshlrev_b32 v32, 3, v1')
    a('s_mov_b32 exec_hi, 0')
    a(f'buffer_store_dwordx2 v[28:29], v32, {WSR}, s{S_T+8} offen sc1')
    a('s_mov_b64 exec, -1')
    a('s_branch L_gv2')
    a.label('L_gv1')
    a(f's_lshl_b32 s{S_T+8}, s{SJ}, 8')
    a(f's_add_u32 s{S_T+8}, s{S_T+8}, {WS_GB - 14*256}')
    a('v_lshlrev_b32 v32, 2, v1')
    a('s_mov_b32 exec_lo, 0x55555555')
    a('s_mov_b32 exec_hi, 0x55555555')
    a(f'buffer_store_dwordx2 v[30:31], v32, {WSR}, s{S_T+8} offen sc1')
    a('s_mov_b64 exec, -1')
    a.label('L_gv2')
    a.restore(st)
    stamp(1)
    a(f's_cmp_ge_u32 s{SJ}, 28')
    a('s_cbranch_scc1 L_spend')
    a(f's_lshl_b32 s{S_T+8}, s{JK}, 7')
    a(f's_add_u32 s{S_T+8}, s{S_T+8}, {WS_MG}')
    a(f's_mov_b32 s{S_T+9}, {WS_ST1}')
    a('v_lshlrev_b32 v32, 6, v13')
    a('v_mov_b32 v33, 0')
    def issue():
        for un in range(2):
            for k in range(4):
                r = 64 + un * 16 + 4 * k
                a(f'buffer_load_dwordx4 v[{r}:{r+3}], v32, {WSR}, s{S_T+8} offen offset:{un*128 + 16*k} sc1')
        a(f'buffer_load_dwordx2 v[96:97], v33, {WSR}, s{S_T+9} offen sc1')
    def check():
        a(f'v_xor_b32 v34, s{S_TAG}, v97')
        for k in range(16):
            a(f'v_xor_b32 v35, s{S_TAG}, v{65+2*k}')
            a('v_or_b32 v34, v34, v35')
        a('v_cmp_ne_u32 vcc, 0, v34')
    poll(issue, check)
    stamp(2)
    a(f's_mul_i32 s{S_T+8}, s{JS}, {8*29}')
    a(f's_add_u32 s{S_T+8}, s{S_T+8}, s{JK}')
    a(f's_lshl_b32 s{S_T+8}, s{S_T+8}, 1')
    a(f's_add_u32 s{S_T+8}, s{S_T+8}, s{JM}')
    a(f's_lshl_b32 s{S_T+8}, s{S_T+8}, 10')
    a(f's_add_u32 s{S_T+8}, s{S_T+8}, {WS_W1F}')
    C1, C0 = 16, 24
    for e in range(16): a(f'v_mov_b32 v{16+e}, 0')
    a('v_mov_b32 v12, 0x3f803f80')
    OUTR = 184
    for un in range(2):
        for j in range(8):
            g = 64 + un * 16 + 2 * j
            a(f'v_lshlrev_b32 v{98+j}, 16, v{g}')
            a(f'v_and_b32 v{106+j}, 0xffff0000, v{g}')
        for jp in range(4):
            for k in range(4):
                r0 = RW + (un * 8 + 2 * jp) * 4 + k; r1 = r0 + 4
                a(f'v_lshlrev_b32 v36, 16, v{r0}')
                a(f'v_and_b32 v37, 0xffff0000, v{r0}')
                a(f'v_lshlrev_b32 v38, 16, v{r1}')
                a(f'v_and_b32 v39, 0xffff0000, v{r1}')
                a(f'v_fmac_f32 v{C0+2*k}, v36, v{106+2*jp}')
                a(f'v_fmac_f32 v{C0+2*k+1}, v37, v{106+2*jp}')
                a(f'v_fmac_f32 v{C0+2*k}, v38, v{107+2*jp}')
                a(f'v_fmac_f32 v{C0+2*k+1}, v39, v{107+2*jp}')
                a(f'v_mul_f32 v36, v36, v{98+2*jp}')
                a(f'v_mul_f32 v37, v37, v{98+2*jp}')
                a(f'v_mul_f32 v38, v38, v{99+2*jp}')
                a(f'v_mul_f32 v39, v39, v{99+2*jp}')
                a(f'v_cvt_pk_bf16_f32 v{OUTR + un*32 + (2*k)*4 + jp}, v36, v38')
                a(f'v_cvt_pk_bf16_f32 v{OUTR + un*32 + (2*k+1)*4 + jp}, v37, v39')
        for t in range(8):
            r = OUTR + un * 32 + t * 4
            a(f's_add_u32 s{S_T+9}, s{S_T+8}, {t*29*2048 + un*2048}')
            a(f'buffer_store_dwordx4 v[{r}:{r+3}], v2, {WSR}, s{S_T+9} offen sc1')
        for jp in range(4):
            for t in range(8):
                a(f'v_dot2c_f32_bf16 v{C1+t}, v{OUTR + un*32 + t*4 + jp}, v12')
    a('s_nop 3')
    for t in range(8): a(f'v_permlane32_swap_b32 v{C1+t}, v{C0+t}')
    for t in range(8): a(f'v_add_f32 v{C1+t}, v{C1+t}, v{C0+t}')
    a(f's_lshl_b32 s{S_T+9}, s{S_WAVE}, 11')
    a(f's_add_u32 s{S_T+9}, s{S_T+9}, 4096')
    a(f'v_lshl_add_u32 v32, v1, 5, s{S_T+9}')
    a(f'ds_write_b128 v32, v[{C1}:{C1+3}]')
    a(f'ds_write_b128 v32, v[{C1+4}:{C1+7}] offset:16')
    a(f's_lshl_b32 s{S_T+9}, s{S_WAVE}, 2')
    a(f's_add_u32 s{S_T+9}, s{S_T+9}, 4096')
    a(f'v_lshl_add_u32 v32, v1, 5, s{S_T+9}')
    a.barrier()
    for w in range(7):
        a(f'ds_read_b32 v{40+w}, v32 offset:{2048*w}')
    a('v_add_f32 v40, v40, v41'); a('v_add_f32 v42, v42, v43'); a('v_add_f32 v44, v44, v45'); a('v_add_f32 v40, v40, v46')
    a('v_add_f32 v42, v42, v44'); a('v_add_f32 v40, v40, v42')
    a('v_cvt_pk_bf16_f32 v41, v40, v40')
    a('v_lshlrev_b32 v41, 16, v41')
    a('v_sub_f32 v42, v40, v41')
    a('v_cvt_pk_bf16_f32 v42, v41, v42')
    a('v_mov_b32 v43, v42')
    a('v_permlane32_swap_b32 v42, v43')
    a(f's_lshl_b32 s{S_T+8}, s{JS}, 3')
    a(f's_add_u32 s{S_T+8}, s{S_T+8}, s{S_WAVE}')
    a(f's_mul_i32 s{S_T+8}, s{S_T+8}, {29*2048}')
    a(f's_lshl_b32 s{S_T+9}, s{JM}, 10')
    a(f's_add_u32 s{S_T+8}, s{S_T+8}, s{S_T+9}')
    a(f's_lshl_b32 s{S_T+9}, s{JH}, 3')
    a(f's_add_u32 s{S_T+8}, s{S_T+8}, s{S_T+9}')
    a(f's_add_u32 s{S_T+8}, s{S_T+8}, {WS_W1F + 28*2048}')
    a(f'buffer_store_dwordx2 v[42:43], v2, {WSR}, s{S_T+8} offen sc1')
    a.force_wait(vm=0)
    a('s_barrier')
    a(f's_cmp_lg_u32 s{S_WAVE}, 0')
    a('s_cbranch_scc1 L_end')
    a('v_mov_b32 v40, 1')
    a('v_lshlrev_b32 v41, 8, v1')
    a(f's_mov_b32 s{S_T+9}, {CNT_W}')
    a('s_mov_b64 exec, 0xff')
    a(f'buffer_atomic_add v40, v41, {WSR}, s{S_T+9} offen sc1')
    a('s_mov_b64 exec, -1')
    stamp(3)
    a.label('L_spend')
    stamp_flush()
    a.label('L_end')
    a('s_endpgm')
    ref = open('adaLN_cond__ssm_conv_s4__glu_gated_bilinear__prompt.s.ref').read()
    head = ''.join(l + '\n' for l in ref.split('\n') if l.startswith(';') and '@launch' not in l and 'Override' not in l and 'grid=ceil' not in l)
    txt = head + f'; @launch grid=(256,1,1) block=(512,1,1) lds={LDS_BYTES}\n' + HEADER + kernel_text(KN, a.text())
    txt += '.section .rodata,"a"\n' + kernel_desc(KN, 256, 102)
    return txt

if __name__ == '__main__':
    out = sys.argv[1] if len(sys.argv) > 1 else 'adaLN_cond__ssm_conv_s4__glu_gated_bilinear__prompt.s'
    dbg = 'debug' in sys.argv; stm = 'stamps' in sys.argv
    open(out, 'w').write(build(debug=dbg, stamps=stm))
    print('wrote', out)
```

```python
import re, copy

def v(n, c=1):
    return f'v{n}' if c == 1 else f'v[{n}:{n+c-1}]'
def s(n, c=1):
    return f's{n}' if c == 1 else f's[{n}:{n+c-1}]'

_REG = re.compile(r'^(-?)(\|?)(abs\()?([vsa])(?:(\d+)|\[(\d+):(\d+)\])\)?\|?$')

def regs_of(tok):
    tok = tok.strip()
    if tok in ('vcc', 'exec', 'm0', 'scc'):
        return {tok}
    if tok in ('vcc_lo', 'vcc_hi'):
        return {'vcc'}
    if tok in ('exec_lo', 'exec_hi'):
        return {'exec'}
    m = _REG.match(tok)
    if not m:
        return set()
    k = m.group(4)
    if m.group(5) is not None:
        return {k + m.group(5)}
    return {k + str(i) for i in range(int(m.group(6)), int(m.group(7)) + 1)}

def split_ops(text):
    out, depth, cur = [], 0, ''
    for ch in text:
        if ch in '[(':
            depth += 1
        if ch in '])':
            depth -= 1
        if ch == ',' and depth == 0:
            out.append(cur.strip()); cur = ''
        else:
            cur += ch
    if cur.strip():
        out.append(cur.strip())
    mods = ''
    if out:
        parts = out[-1].split(None, 1)
        if len(parts) == 2:
            out[-1] = parts[0]; mods = parts[1]
    return out, mods

TRANS = ('v_exp_f32', 'v_log_f32', 'v_rcp_f32', 'v_rsq_f32', 'v_sqrt_f32', 'v_sin_f32', 'v_cos_f32', 'v_rcp_iflag_f32')

class Ins:
    __slots__ = ('text', 'op', 'kind', 'wr', 'rd', 'dpp', 'trans', 'passes', 'srcC', 'srcAB', 'wide_store', 'stdata', 'ldsdma', 'states', 'permlane', 'rdlane', 'dot')

def parse(text):
    t = text.split(';')[0].strip()
    sp = t.split(None, 1)
    op = sp[0]
    ops, mods = split_ops(sp[1]) if len(sp) > 1 else ([], '')
    I = Ins(); I.text = text; I.op = op; I.wr = set(); I.rd = set(); I.dpp = False; I.trans = False
    I.passes = 0; I.srcC = set(); I.srcAB = set(); I.wide_store = False; I.stdata = set(); I.ldsdma = False
    I.states = 1; I.permlane = False; I.rdlane = False; I.dot = False
    R = [regs_of(o) for o in ops]
    allmods = ' ' + mods + ' '
    def rd(*idx):
        for i in idx:
            if i < len(R): I.rd |= R[i]
    if op.startswith('v_mfma'):
        I.kind = 'mfma'; I.wr = R[0]; rd(1, 2, 3); I.srcC = R[3]; I.srcAB = R[1] | R[2]
        I.passes = 8 if '32x32x16' in op else 4 if '16x16x32' in op else None
        assert I.passes
    elif op.startswith('v_'):
        I.kind = 'valu'
        base = re.sub(r'_(e32|e64|dpp|sdwa)$', '', op)
        I.trans = base in TRANS
        I.dpp = op.endswith('_dpp')
        I.dot = base.startswith('v_dot')
        if base.startswith('v_cmpx'):
            I.wr = R[0] | {'exec'}; rd(*range(1, len(R)))
        elif base.startswith('v_cmp'):
            I.wr = R[0]; rd(*range(1, len(R)))
        elif base in ('v_readfirstlane_b32', 'v_readlane_b32'):
            I.wr = R[0]; rd(*range(1, len(R))); I.rdlane = True
        elif base.startswith('v_permlane') and 'swap' in base:
            I.wr = R[0] | R[1]; rd(0, 1); I.permlane = True
        elif base in ('v_add_co_u32', 'v_sub_co_u32', 'v_addc_co_u32', 'v_subb_co_u32', 'v_mad_u64_u32', 'v_div_scale_f32'):
            I.wr = R[0] | R[1]; rd(*range(2, len(R)))
        elif base == 'v_nop':
            pass
        else:
            I.wr = R[0]; rd(*range(1, len(R)))
            if base.startswith(('v_fmac', 'v_dot2c', 'v_dot4c', 'v_pk_fmac', 'v_writelane')) or I.dpp or op.endswith('_sdwa'):
                rd(0)
            if base == 'v_cndmask_b32' and len(R) == 3:
                I.rd.add('vcc')
        I.rd.add('exec')
    elif op.startswith('ds_'):
        I.kind = 'ds'
        if op.startswith(('ds_read', 'ds_bpermute', 'ds_permute', 'ds_swizzle')) or '_rtn' in op:
            I.wr = R[0]; rd(*range(1, len(R)))
        else:
            rd(*range(len(R)))
    elif op.startswith(('buffer_', 'global_')):
        I.kind = 'vmem'
        if op in ('buffer_inv', 'buffer_wbl2'):
            pass
        elif ' lds ' in allmods or op.startswith('global_load_lds'):
            I.ldsdma = True; rd(*range(len(R))); I.rd.add('m0')
        elif '_load' in op:
            I.wr = R[0]; rd(*range(1, len(R)))
        elif '_atomic' in op:
            rd(*range(len(R)))
            if ' sc0 ' in allmods:
                I.wr = R[0]
        else:
            rd(*range(len(R)))
            data = R[0] if op.startswith('buffer_') else R[1]
            I.stdata = data
            I.wide_store = op.endswith(('x3', 'x4'))
    elif op.startswith('s_'):
        if op.startswith(('s_load', 's_buffer_load', 's_memtime', 's_memrealtime')):
            I.kind = 'smem'; I.wr = R[0]; rd(*range(1, len(R)))
        elif op == 's_nop':
            I.kind = 'nop'; I.states = int(ops[0], 0) + 1
        elif op in ('s_waitcnt', 's_barrier', 's_sleep', 's_setprio', 's_endpgm', 's_branch') or op.startswith('s_cbranch'):
            I.kind = 'ctl'
            if 'vcc' in op: I.rd.add('vcc')
            if 'exec' in op: I.rd.add('exec')
        elif op.startswith('s_cmp') or op.startswith('s_bitcmp'):
            I.kind = 'salu'; rd(*range(len(R)))
        elif 'saveexec' in op:
            I.kind = 'salu'; I.wr = R[0] | {'exec'}; rd(1); I.rd.add('exec')
        else:
            I.kind = 'salu'; I.wr = R[0]; rd(*range(1, len(R)))
            if op in ('s_addk_i32', 's_mulk_i32', 's_cmov_b32', 's_cmov_b64'): rd(0)
    else:
        raise ValueError('unknown op ' + text)
    return I

def isv(r): return r[0] in 'va' and r not in ('vcc',)
def iss(r): return r[0] == 's' and r != 'scc' or r in ('vcc', 'exec', 'm0')

class Asm:
    def __init__(self):
        self.out = []
        self.hist = []
        self.vm = []
        self.lg = []
        self.auto_wait = True
        self.nnop = 0
    def snap(self):
        return (list(self.hist), [set(x) for x in self.vm], [(k, set(r)) for k, r in self.lg])
    def restore(self, st):
        self.hist = list(st[0]); self.vm = [set(x) for x in st[1]]; self.lg = [(k, set(r)) for k, r in st[2]]
    def raw(self, text):
        self.out.append(text)
    def comment(self, text):
        self.out.append('    ; ' + text)
    def label(self, name, reset=True):
        self.out.append(name + ':')
    def _push(self, I):
        self.out.append('    ' + I.text)
        self.hist.append(I)
        if len(self.hist) > 40:
            self.hist = self.hist[-40:]
    def wait(self, vm=None, lg=None):
        parts = []
        if vm is not None:
            if len(self.vm) > vm or not self.auto_wait:
                parts.append(f'vmcnt({min(vm, 63)})')
            self.vm = self.vm[len(self.vm) - vm:] if vm < len(self.vm) and vm > 0 else ([] if vm == 0 else self.vm)
        if lg is not None:
            if len(self.lg) > lg or not self.auto_wait:
                parts.append(f'lgkmcnt({min(lg, 15)})')
            self.lg = self.lg[len(self.lg) - lg:] if lg < len(self.lg) and lg > 0 else ([] if lg == 0 else self.lg)
        if parts:
            self._push(parse('s_waitcnt ' + ' '.join(parts)))
    def force_wait(self, vm=None, lg=None):
        parts = []
        if vm is not None:
            parts.append(f'vmcnt({vm})'); self.vm = self.vm[len(self.vm) - vm:] if 0 < vm < len(self.vm) else ([] if vm == 0 else self.vm)
        if lg is not None:
            parts.append(f'lgkmcnt({lg})'); self.lg = self.lg[len(self.lg) - lg:] if 0 < lg < len(self.lg) else ([] if lg == 0 else self.lg)
        self._push(parse('s_waitcnt ' + ' '.join(parts)))
    def _auto_waits(self, I):
        touched = I.rd | I.wr
        nvm = None
        for i in range(len(self.vm) - 1, -1, -1):
            hit = self.vm[i] & touched
            if hit:
                if I.kind == 'vmem' and not (self.vm[i] & I.rd) and 'd16' in I.op:
                    continue
                nvm = len(self.vm) - 1 - i
                break
        nlg = None
        smem_pending = any(k == 'smem' for k, _ in self.lg)
        for i in range(len(self.lg) - 1, -1, -1):
            k, r = self.lg[i]
            if r & touched:
                if I.kind == 'ds' and not (r & I.rd) and 'd16' in I.op:
                    continue
                nlg = 0 if smem_pending else len(self.lg) - 1 - i
                break
        if nvm is not None and nvm > 63:
            nvm = 63
        if nlg is not None and nlg > 15:
            nlg = 15
        self.wait(nvm, nlg)
    def _need(self, I):
        need = 0
        dist = 0
        for P in reversed(self.hist):
            req = 0
            pv = {r for r in P.wr if isv(r)}
            ps = {r for r in P.wr if not isv(r)}
            if P.kind == 'valu':
                if I.kind == 'mfma' and pv & I.rd: req = max(req, 2)
                if I.kind == 'mfma' and 'exec' in P.wr: req = max(req, 4)
                if I.kind == 'vmem' and (ps - {'exec'}) & I.rd: req = max(req, 5)
                if I.kind == 'valu':
                    if (ps - {'exec'}) & I.rd: req = max(req, 4 if (I.rdlane or I.op.startswith('v_writelane')) else 2)
                    if I.dpp and pv & I.rd: req = max(req, 2)
                    if I.dpp and 'exec' in P.wr: req = max(req, 5)
                    if I.rdlane and pv & I.rd: req = max(req, 1)
                    if (I.rdlane or I.permlane) and 'exec' in P.wr: req = max(req, 4)
                    if I.permlane and pv & I.rd: req = max(req, 2)
                    if P.trans and not I.trans and pv & I.rd: req = max(req, 1)
                    if P.op.endswith('_sdwa') and pv & (I.rd | I.wr): req = max(req, 1)
                    if P.dot and pv & (I.rd | I.wr):
                        same = re.sub(r'_(e32|e64)$', '', P.op) == re.sub(r'_(e32|e64)$', '', I.op)
                        if not same: req = max(req, 3)
                        else:
                            ops, _ = split_ops(I.text.split(';')[0].split(None, 1)[1])
                            ab = regs_of(ops[1]) | regs_of(ops[2])
                            if pv & ab: req = max(req, 3)
                if P.dot and I.kind in ('mfma', 'vmem', 'ds') and pv & I.rd: req = max(req, 3)
                if I.kind == 'ctl' and I.op in ('s_cbranch_vccz', 's_cbranch_vccnz', 's_cbranch_execz', 's_cbranch_execnz') and ps & I.rd:
                    req = max(req, 5)
                if I.kind == 'salu' and ps & I.rd: req = max(req, 1)
            elif P.kind == 'mfma':
                big = 12 if P.passes == 8 else 8
                if I.kind == 'mfma':
                    if P.wr & I.srcAB: req = max(req, big)
                    if P.wr & I.srcC and not (P.wr == I.srcC and P.passes == I.passes): req = max(req, big - 2)
                    if P.wr & I.wr and not (P.wr & I.srcC): req = max(req, big)
                elif I.kind in ('valu', 'vmem', 'ds'):
                    if P.wr & (I.rd | I.wr): req = max(req, big)
                    if I.kind == 'valu' and P.srcC & I.wr: req = max(req, 7 if P.passes == 8 else 3)
            elif P.kind == 'vmem':
                if P.wide_store and P.stdata & I.wr: req = max(req, 2)
            elif P.kind == 'salu':
                if 'm0' in P.wr and (I.ldsdma or 'addtid' in I.op): req = max(req, 1)
            if P.kind == 'ds' and P.op in ('ds_write_b128', 'ds_write_b96') and False:
                pass
            need = max(need, req - dist)
            dist += P.states
            if dist >= 20:
                break
        return need
    def __call__(self, text):
        for line in text.split('\n'):
            line = line.strip()
            if not line or line.startswith(';'):
                continue
            I = parse(line)
            if I.op.startswith('v_pk_') and re.search(r'op_sel:\[[^\]]*1', line) and not getattr(self, 'allow_opsel', False):
                raise ValueError('packed op with op_sel=1 outside an MFMA-free region (wrong results beside 16x16x32 MFMAs): ' + line)
            if self.auto_wait:
                self._auto_waits(I)
            n = self._need(I)
            while n > 0:
                k = min(n, 16)
                self._push(parse(f's_nop {k-1}')); self.nnop += 1
                n -= k
            self._push(I)
            if I.kind == 'vmem' and I.op not in ('buffer_inv', 'buffer_wbl2'):
                self.vm.append(set(I.wr))
            elif I.kind == 'vmem':
                self.vm.append(set())
            elif I.kind == 'ds':
                self.lg.append(('ds', set(I.wr)))
            elif I.kind == 'smem':
                self.lg.append(('smem', set(I.wr)))
                self.lg.append(('smem', set()))
            elif I.op == 's_waitcnt':
                m = re.search(r'vmcnt\((\d+)\)', line)
                if m:
                    k = int(m.group(1)); self.vm = self.vm[len(self.vm) - k:] if 0 < k < len(self.vm) else ([] if k == 0 else self.vm)
                m = re.search(r'lgkmcnt\((\d+)\)', line)
                if m:
                    k = int(m.group(1)); self.lg = self.lg[len(self.lg) - k:] if 0 < k < len(self.lg) else ([] if k == 0 else self.lg)
    def vm_mark(self):
        tok = object()
        self.vm[-1] = set(self.vm[-1]) | {tok}
        return tok
    def wait_mark(self, tok):
        for i in range(len(self.vm) - 1, -1, -1):
            if tok in self.vm[i]:
                self.wait(vm=min(63, len(self.vm) - 1 - i))
                return
    def need(self, regs):
        I = parse('s_nop 0'); I.rd = set(regs)
        self._auto_waits(I)
    def barrier(self, lds=True):
        if lds:
            self.wait(lg=0)
        self('s_barrier')
    def text(self):
        return '\n'.join(self.out) + '\n'

HEADER = '.amdgcn_target "amdgcn-amd-amdhsa--gfx950"\n.text\n'
def kernel_text(name, body):
    return f'.globl {name}\n.p2align 8\n.type {name},@function\n{name}:\n{body}'
def kernel_desc(name, vgpr, sgpr):
    return f""".p2align 6
.amdhsa_kernel {name}
  .amdhsa_next_free_vgpr {vgpr}
  .amdhsa_next_free_sgpr {sgpr}
  .amdhsa_accum_offset {(vgpr + 3) // 4 * 4}
  .amdhsa_group_segment_fixed_size 0
  .amdhsa_kernarg_size 144
  .amdhsa_user_sgpr_count 2
  .amdhsa_user_sgpr_kernarg_segment_ptr 1
  .amdhsa_system_sgpr_workgroup_id_x 1
.end_amdhsa_kernel
"""
```

```python
import sys, struct, os
sys.path.insert(0, 'work')
from asmgen import *

KN = 'adaLN_cond__ssm_conv_s4__glu_gated_bilinear__prompt_kernel'
def fhex(x): return '0x%08x' % struct.unpack('<I', struct.pack('<f', x))[0]
LOG2E = fhex(1.4426950408889634)
INV2PI = fhex(0.15915494309189535)

WS_EPOCH = 0
WS_FW = 0x200
WS_CNT = 0x1000
CNT_S2 = WS_CNT
CNT_G = WS_CNT + 24 * 256
WS_ST1 = 0x8000
WS_MODP = 0xC000
WS_ST2 = 0x10000
WS_X1T = 0x100000
WS_AT = 0x2C0000
WS_WC = 0x480000
WS_WDF = 0x800000
WS_XG = 0x9A0000
WS_PART = 0xD40000
WS_DUMP = 0x2000000
WS_TS = 0x3000000
OOB = 0x10000000
AB_ROW = 1056
AB_CH = 53 * AB_ROW
L_TAB = 112000
L_WT = 118144
L_FLAG = L_WT + 64
L_KC = 0; KC_COPY = 4160; KC_CH = 8 * KC_COPY
L_U = 66560; U_PL = 1280; U_CH = 4 * U_PL
L_XL = 76800; XL_CH = 4096
L_CK = 86016
L_EX = 120064
L_XR = 120064; XR_ROW = 912
L_AT = 0; L_WR = 57344; L_HH = 122880; L_XS = 155648
LDS_BYTES = 163840
S_WAVE = 3
P_X, P_ARE, P_AIM, P_BRE, P_BIM, P_CRE, P_CIM, P_LDT = 16, 18, 20, 22, 24, 26, 28, 30
SRD_G = 4; SRD_U = 8
P_DSK, P_WG, P_WU, P_WD, P_C, P_WM, P_OUT, P_DBG, P_WS = 32, 36, 38, 40, 42, 44, 46, 48, 50
SRD_WS = 52; SRD_A = 56
S_TAG = 60
S_X8, S_I, S_D0, S_RT, S_S, S_CP, S_LDT, S_DK, S_FLAG, S_W1D, S_WDD = 61, 62, 63, 64, 65, 66, 67, 68, 69, 70, 71
S_T = 72
S_TS = 90
POLL_MAX = 20000

def build(debug=False, stamps=False, exp=()):
    a = Asm()
    NT = '' if 'nont' in exp else ' nt'
    nst = [0]
    prev = [None]
    names = {}
    def stamp(name, clk=False):
        if not stamps: return
        if name not in names: names[name] = len(names)
        i = names[name]
        p = S_TS + 2 * (nst[0] & 1); nst[0] += 1
        a.raw(f'    {"s_memtime" if clk else "s_memrealtime"} s[{p}:{p+1}]')
        a.lg.append(('smem', set()))
        if prev[0] is not None:
            a.raw(f'    v_writelane_b32 v255, s{prev[0][0]}, {prev[0][1]}')
        prev[0] = (p, i)
    def stamp_flush():
        if not stamps: return
        a.raw('    s_waitcnt lgkmcnt(0)')
        a.raw(f'    v_writelane_b32 v255, s{prev[0][0]}, {prev[0][1]}')
        a(f's_lshl_b32 s{S_TS+4}, s2, 3')
        a(f's_add_u32 s{S_TS+4}, s{S_TS+4}, s{S_WAVE}')
        a(f's_lshl_b32 s{S_TS+4}, s{S_TS+4}, 8')
        a(f's_add_u32 s{S_TS+4}, s{S_TS+4}, {WS_TS}')
        a(f'v_lshlrev_b32 v254, 2, v1')
        a(f'buffer_store_dword v255, v254, s[{SRD_WS}:{SRD_WS+3}], s{S_TS+4} offen')
    build.names = names

    def wave_scan(regs):
        for mod in ('row_shr:1 row_mask:0xf', 'row_shr:2 row_mask:0xf', 'row_shr:4 row_mask:0xf', 'row_shr:8 row_mask:0xf',
                    'row_bcast:15 row_mask:0xa', 'row_bcast:31 row_mask:0xc'):
            for r in regs:
                a(f'v_add_f32_dpp v{r}, v{r}, v{r} {mod} bank_mask:0xf')
    def round_bf16(r):
        a(f'v_cvt_pk_bf16_f32 v{r}, v{r}, v{r}')
        a(f'v_lshlrev_b32 v{r}, 16, v{r}')
    def std_from(mean, var):
        a(f'v_fma_f32 v{var}, -v{mean}, v{mean}, v{var}')
        a(f'v_max_f32 v{var}, 0, v{var}')
        round_bf16(var)
        a(f'v_add_f32 v{var}, {fhex(1e-5)}, v{var}')
        round_bf16(var)
        a(f'v_sqrt_f32 v{var}, v{var}')
    npoll = [0]
    def poll(issue, check, sleep=1, first_issued=False):
        n = npoll[0]; npoll[0] += 1
        a(f's_mov_b32 s{S_T+15}, 0')
        if first_issued:
            a(f's_branch L_pchk{n}')
        a.label(f'L_poll{n}')
        issue()
        if first_issued:
            a.label(f'L_pchk{n}')
        a.force_wait(vm=0)
        check()
        a(f's_cbranch_vccz L_pdone{n}')
        if sleep: a(f's_sleep {sleep}')
        a(f's_add_u32 s{S_T+15}, s{S_T+15}, 1')
        a(f's_cmp_lt_u32 s{S_T+15}, {POLL_MAX}')
        a(f's_cbranch_scc1 L_poll{n}')
        a.label(f'L_pdone{n}')

    WSR = f's[{SRD_WS}:{SRD_WS+3}]'
    AR = f's[{SRD_A}:{SRD_A+3}]'
    a('s_cmp_ge_u32 s2, 256')
    a('s_cbranch_scc1 L_end')
    a('s_load_dwordx16 s[16:31], s[0:1], 0')
    a('s_load_dwordx16 s[32:47], s[0:1], 64')
    a('s_load_dwordx4 s[48:51], s[0:1], 128')
    a('v_and_b32 v1, 63, v0')
    a('v_lshrrev_b32 v3, 6, v0')
    a('v_lshlrev_b32 v2, 4, v1')
    a(f'v_readfirstlane_b32 s{S_WAVE}, v3')
    a(f's_and_b32 s{S_X8}, s2, 7')
    a(f's_lshr_b32 s{S_I}, s2, 3')
    if stamps: a('v_mov_b32 v255, 0')
    a(f's_lshl_b32 s{S_T}, s2, 3')
    a(f's_add_u32 s{S_T}, s{S_T}, s{S_WAVE}')
    a(f's_mul_i32 s{S_T+1}, s{S_T}, 896')
    a(f's_mov_b32 s{SRD_A+2}, 896')
    a(f's_mov_b32 s{SRD_A+3}, 0x20000')
    a(f's_mov_b32 s{SRD_WS+2}, {OOB}')
    a(f's_mov_b32 s{SRD_WS+3}, 0x20000')
    a(f's_or_b32 s{S_T+2}, s2, s{S_WAVE}')
    a(f's_cmp_eq_u32 s{S_T+2}, 0')
    a(f's_cselect_b32 s{S_T+2}, {WS_CNT}, s{SRD_WS+2}')
    a(f'v_lshl_add_u32 v3, v1, 8, s{S_T+2}')
    a('v_mov_b32 v34, 0')
    a('v_mov_b32 v35, 0')
    a('v_mov_b32 v36, 0x3f803f80')
    a.wait(lg=0)
    a(f's_load_dword s{S_TAG}, s[{P_WS}:{P_WS+1}], {WS_EPOCH}')
    a(f's_add_u32 s{SRD_A}, s{P_X}, s{S_T+1}')
    a(f's_addc_u32 s{SRD_A+1}, s{P_X+1}, 0')
    a(f's_mov_b32 s{SRD_G}, s{P_WG}')
    a(f's_mov_b32 s{SRD_G+1}, s{P_WG+1}')
    a(f's_mov_b32 s{SRD_G+2}, {448*3584}')
    a(f's_mov_b32 s{SRD_G+3}, 0x20000')
    a(f's_mov_b32 s{SRD_U}, s{P_WU}')
    a(f's_mov_b32 s{SRD_U+1}, s{P_WU+1}')
    a(f's_mov_b32 s{SRD_U+2}, {448*3584}')
    a(f's_mov_b32 s{SRD_U+3}, 0x20000')
    a(f's_mov_b32 s{SRD_WS}, s{P_WS}')
    a(f's_mov_b32 s{SRD_WS+1}, s{P_WS+1}')
    a(f'buffer_store_dword v34, v3, {WSR}, 0 offen sc1')
    a(f'buffer_load_dwordx4 v[4:7], v2, {AR}, 0 offen{NT}')
    stamp('start')
    a('s_cmp_ge_u32 s2, 224')
    a('s_cbranch_scc1 L_spare')
    fork = a.snap(); forkprev = (prev[0], nst[0])

    def row_addr():
        a(f's_mul_i32 s{S_T+3}, s{S_WAVE}, {XR_ROW}')
        a(f's_add_u32 s{S_T+3}, s{S_T+3}, {L_XR}')
        a(f'v_add_u32 v37, s{S_T+3}, v2')
        a('v_lshrrev_b32 v38, 2, v0')
        a('v_and_b32 v39, 3, v0')
        a(f'v_mul_u32_u24 v14, {2*XR_ROW}, v39')
        a('v_lshl_add_u32 v14, v38, 2, v14')
        a(f'v_add_u32 v14, {L_XR}, v14')
        a('v_lshlrev_b32 v38, 14, v38')
        a('v_lshl_add_u32 v38, v39, 4, v38')
        a(f's_cmp_ge_u32 s{S_WAVE}, 6')
        a(f's_cselect_b32 s{S_T+3}, s{SRD_WS+2}, {128*16384}')
        a(f'v_add_u32 v39, s{S_T+3}, v38')
        a(f's_lshl_b32 s{S_T+4}, s2, 6')
        a(f's_add_u32 s{S_T+4}, s{S_T+4}, {WS_XG}')
        a(f's_lshl_b32 s{S_T+3}, s{S_T}, 3')
        a(f's_add_u32 s{S_T+3}, s{S_T+3}, {WS_ST1}')
    def row_part1():
        o = ['s_mov_b32 exec_hi, 0x00ffffff', 'ds_write_b128 v37, v[4:7]', 's_mov_b32 exec_hi, -1']
        for i in range(4):
            o += [f'v_dot2c_f32_bf16 v34, v{4+i}, v36', f'v_dot2c_f32_bf16 v35, v{4+i}, v{4+i}']
        o += [f'v_mov_b32 v{r}, s{S_TAG}' for r in (5, 7, 17, 19)] + ['XG']
        for mod in ('row_shr:1 row_mask:0xf', 'row_shr:2 row_mask:0xf', 'row_shr:4 row_mask:0xf', 'row_shr:8 row_mask:0xf',
                    'row_bcast:15 row_mask:0xa', 'row_bcast:31 row_mask:0xc'):
            o += [f'v_add_f32_dpp v{r}, v{r}, v{r} {mod} bank_mask:0xf' for r in (34, 35)]
        o += [f'v_mul_f32 v34, {fhex(1/448)}, v34', f'v_mul_f32 v35, {fhex(1/448)}, v35',
              'v_fma_f32 v35, -v34, v34, v35', 'v_max_f32 v35, 0, v35', 'v_cvt_pk_bf16_f32 v35, v35, v35', 'v_lshlrev_b32 v35, 16, v35',
              f'v_add_f32 v35, {fhex(1e-5)}, v35', 'v_cvt_pk_bf16_f32 v35, v35, v35', 'v_lshlrev_b32 v35, 16, v35', 'v_sqrt_f32 v35, v35',
              'v_mov_b32 v36, 0', 'v_cvt_pk_bf16_f32 v34, v34, v35', f'v_mov_b32 v35, s{S_TAG}',
              's_mov_b32 exec_lo, 0', 's_mov_b32 exec_hi, 0x80000000',
              f'buffer_store_dwordx2 v[34:35], v36, {WSR}, s{S_T+3} offen sc1', 's_mov_b64 exec, -1']
        return o
    def row_part2():
        a('ds_read_b32 v4, v14')
        a(f'ds_read_b32 v6, v14 offset:{XR_ROW}')
        a('ds_read_b32 v16, v14 offset:512')
        a(f'ds_read_b32 v18, v14 offset:{XR_ROW+512}')
        return [f'buffer_store_dwordx4 v[4:7], v38, {WSR}, s{S_T+4} offen sc1', f'buffer_store_dwordx4 v[16:19], v39, {WSR}, s{S_T+4} offen sc1']

    a(f's_mul_i32 s{S_CP}, s{S_X8}, 28')
    a(f's_add_u32 s{S_CP}, s{S_CP}, s{S_I}')
    a(f's_lshl_b32 s{S_D0}, s{S_CP}, 1')
    a(f's_lshl_b32 s{S_T+5}, s{S_D0}, 9')
    a(f'v_lshl_add_u32 v3, v0, 1, s{S_T+5}')
    for i, p in enumerate((P_ARE, P_AIM, P_BRE, P_BIM, P_CRE, P_CIM)):
        a(f'global_load_short_d16_hi v{8+i}, v3, s[{p}:{p+1}]{NT}')
    a(f's_lshl_b32 s{S_T+5}, s{S_D0}, 1')
    a(f's_load_dword s{S_LDT}, s[{P_LDT}:{P_LDT+1}], s{S_T+5}')
    a(f's_load_dword s{S_DK}, s[{P_DSK}:{P_DSK+1}], s{S_T+5}')
    a(f's_and_b32 s{S_T+5}, s{S_X8}, 1')
    a(f's_lshl_b32 s{S_T+5}, s{S_T+5}, 2')
    a(f's_lshr_b32 s{S_S}, s{S_I}, 3')
    a(f's_add_u32 s{S_S}, s{S_S}, s{S_T+5}')
    a(f's_and_b32 s{S_RT}, s{S_I}, 7')
    a(f's_add_u32 s{S_T+5}, s{S_T+5}, s{S_RT}')
    a(f's_cmp_ge_u32 s{S_I}, 24')
    a(f's_cselect_b32 s{S_S}, 3, s{S_S}')
    a(f's_cselect_b32 s{S_RT}, s{S_T+5}, s{S_RT}')
    a(f's_and_b32 s{S_T+5}, s{S_X8}, 6')
    a(f's_lshl_b32 s{S_T+5}, s{S_T+5}, 2')
    a(f's_add_u32 s{S_RT}, s{S_RT}, s{S_T+5}')
    GA = 100
    a('v_and_b32 v52, 255, v0')
    a('v_lshlrev_b32 v52, 3, v52')
    a('v_lshrrev_b32 v53, 8, v0')
    a(f'v_mul_u32_u24 v53, 3072, v53')
    a(f'v_add_u32 v53, {L_TAB - 4*(0x4300 - 128)}, v53')
    for t in range(0, 8, 2):
        r0, r1 = GA + t, GA + t + 1
        a(f'v_add_u32 v{r0}, {7 - t}, v52')
        a(f'v_add_u32 v{r1}, {6 - t}, v52')
        a(f'v_cvt_f32_i32 v54, v{r0}')
        a(f'v_cvt_f32_i32 v55, v{r1}')
        a(f'v_cvt_pk_bf16_f32 v54, v54, v55')
        a(f'v_min_i32 v{r0}, 127, v{r0}')
        a(f'v_min_i32 v{r1}, 127, v{r1}')
        a(f'v_lshrrev_b32 v55, 16, v54')
        a(f'v_and_b32 v54, 0xffff, v54')
        a(f'v_add_u32 v{r0}, {0x4300 - 128}, v{r0}')
        a(f'v_add_u32 v{r1}, {0x4300 - 128}, v{r1}')
        a(f'v_max_u32 v{r0}, v{r0}, v54')
        a(f'v_max_u32 v{r1}, v{r1}, v55')
        a(f'v_lshl_add_u32 v{r0}, v{r0}, 2, v53')
        a(f'v_lshl_add_u32 v{r1}, v{r1}, 2, v53')
    def tabpos(i):
        if i < 0: return 767
        if i < 128: return i
        u = struct.unpack('<I', struct.pack('<f', float(i)))[0]
        return ((u + 0x7FFF + ((u >> 16) & 1)) >> 16) - 0x4300 + 128
    a(f's_and_b32 s{S_T+8}, s{S_WAVE}, 3')
    a(f'v_add_u32 v53, {4*(0x4300 - 128)}, v53')
    for t in range(8, 15):
        c = [tabpos(512 * qq + 7 - t) * 4 for qq in range(4)]
        a(f's_mov_b32 s{S_T+9}, {c[0] | (c[1] << 16)}')
        a(f's_cmp_ge_u32 s{S_T+8}, 2')
        a(f's_cselect_b32 s{S_T+9}, {c[2] | (c[3] << 16)}, s{S_T+9}')
        a(f's_bitcmp1_b32 s{S_T+8}, 0')
        a(f's_cselect_b32 s{S_T+10}, 16, 0')
        a(f's_lshr_b32 s{S_T+9}, s{S_T+9}, s{S_T+10}')
        a(f's_and_b32 s{S_T+9}, s{S_T+9}, 0xffff')
        a(f'v_add_u32 v{GA+t}, s{S_T+9}, v53')
    row_addr()
    a.wait(lg=0)
    a(f's_add_u32 s{S_TAG}, s{S_TAG}, 1')
    stamp('pre-row')
    a.allow_opsel = True
    a(f's_lshl_b32 s{S_T+9}, s{S_LDT}, 16')
    a(f's_and_b32 s{S_T+10}, s{S_LDT}, 0xffff0000')
    a(f's_lshl_b32 s{S_T+11}, s{S_DK}, 16')
    a(f's_and_b32 s{S_DK}, s{S_DK}, 0xffff0000')
    a(f's_cmp_ge_u32 s{S_WAVE}, 4')
    a(f's_cselect_b32 s{S_T+9}, s{S_T+10}, s{S_T+9}')
    a(f's_cselect_b32 s{S_DK}, s{S_DK}, s{S_T+11}')
    a(f'v_mov_b32 v60, {LOG2E}')
    a(f'v_mul_f32 v60, s{S_T+9}, v60')
    a(f's_cselect_b32 s{S_T+9}, {AB_CH}, 0')
    a('v_exp_f32 v60, v60')
    a(f's_and_b32 s{S_T+10}, s{S_WAVE}, 3')
    a(f's_lshl_b32 s{S_T+10}, s{S_T+10}, 8')
    a(f's_add_u32 m0, s{S_T+10}, s{S_T+9}')
    round_bf16(60)
    a('v_mul_f32 v61, v60, v8')
    a('v_mul_f32 v62, v60, v9')
    a(f'v_mul_f32 v61, {LOG2E}, v61')
    a(f'v_mul_f32 v62, {INV2PI}, v62')
    a('v_mul_f32 v10, v60, v10')
    a('v_mul_f32 v11, v60, v11')
    W_, E1, E2, E4, E8, E16, E256, CA, CB0, CB1, CA2, T0, T1, T2 = 64, 66, 68, 70, 72, 74, 76, 78, 80, 82, 84, 86, 88, 90
    es = ((E8, 8.0, T0), (E1, 1.0, T1), (E256, 256.0, T2))
    for r, t, T in es:
        a(f'v_mul_f32 v{T}, {fhex(t)}, v61')
        a(f'v_mul_f32 v{T+1}, {fhex(t)}, v62')
    for r, t, T in es:
        a(f'v_exp_f32 v{T}, v{T}')
        a(f'v_fract_f32 v{T+1}, v{T+1}')
    a(f'v_mul_f32 v{W_}, v12, v10')
    a(f'v_mul_f32 v{W_+1}, v12, v11')
    for r, t, T in es:
        a(f'v_cos_f32 v{r}, v{T+1}')
        a(f'v_sin_f32 v{r+1}, v{T+1}')
    a(f'v_fma_f32 v{W_}, -v13, v11, v{W_}')
    a(f'v_fma_f32 v{W_+1}, v13, v10, v{W_+1}')
    for r, t, T in es:
        a(f'v_pk_mul_f32 v[{r}:{r+1}], v[{r}:{r+1}], v[{T}:{T+1}] op_sel_hi:[1,0]')
    def cmul_ops(d, x, y, t):
        return [f'v_pk_mul_f32 v[{t}:{t+1}], v[{x}:{x+1}], v[{y}:{y+1}] op_sel_hi:[0,1]',
                f'v_pk_fma_f32 v[{d}:{d+1}], v[{x}:{x+1}], v[{y}:{y+1}], v[{t}:{t+1}] op_sel:[1,1,0] op_sel_hi:[1,0,1] neg_lo:[1,0,0]']
    def mkput(regs):
        k = [0]
        def put(row, r, isA):
            p = regs[k[0] % len(regs)]; k[0] += 1
            return [f'v_cvt_pk_bf16_f32 v{p}, v{r}, {"-" if isA else ""}v{r+1}', f'ds_write_addtid_b32 v{p} offset:{row*AB_ROW}']
        return put
    for o in cmul_ops(E16, E8, E8, T0) + cmul_ops(E2, E1, E1, T1) + cmul_ops(E4, E2, E2, T1): a(o)
    chA, chB0, chB1 = [], [], []
    put = mkput([92, 93])
    chA += put(0, W_, True)
    chA += cmul_ops(CA, W_, E1, T0) + put(1, CA, True)
    for p in range(2, 8):
        chA += cmul_ops(CA, CA, E1, T0) + put(p, CA, True)
    chA += cmul_ops(CA, W_, E256, T0) + put(8, CA, True)
    chA += cmul_ops(CA2, CA, E2, T0) + put(9, CA2, True)
    chA += cmul_ops(CA2, CA2, E2, T0) + put(10, CA2, True)
    chA += cmul_ops(CA2, CA2, E2, T0) + put(11, CA2, True)
    chA += cmul_ops(CA, CA, E256, T0) + put(12, CA, True)
    chA += cmul_ops(CA2, CA, E4, T0) + put(13, CA2, True)
    chA += cmul_ops(CA, CA, E256, T0) + put(14, CA, True)
    chA += cmul_ops(CA2, CA, E4, T0) + put(15, CA2, True)
    for r in range(16, 21):
        chA += cmul_ops(CA, CA, E256, T0) + put(r, CA, True)
    put = mkput([94, 95])
    chB0 += ['v_mov_b32 v98, 0x3f80', f'ds_write_addtid_b32 v98 offset:{21*AB_ROW}']
    chB0 += put(21 + 2, E16, False)
    chB0 += cmul_ops(CB0, E16, E16, T1) + put(21 + 4, CB0, False)
    for j in range(6, 32, 2):
        chB0 += cmul_ops(CB0, CB0, E16, T1) + put(21 + j, CB0, False)
    put = mkput([96, 97])
    chB1 += put(21 + 1, E8, False)
    chB1 += cmul_ops(CB1, E8, E16, T2) + put(21 + 3, CB1, False)
    for j in range(5, 32, 2):
        chB1 += cmul_ops(CB1, CB1, E16, T2) + put(21 + j, CB1, False)
    stamp('kgen setup')
    ia = ib = ic = 0
    rp = row_part1()
    xgdone = []
    XG_POS = int(os.environ.get('XG_POS', 40))
    def xg_block(skip_if_not, lab):
        st = a.snap()
        a(f's_cmp_{skip_if_not}_u32 s{S_WAVE}, 4')
        a(f's_cbranch_scc0 L_xg{lab}')
        a.force_wait(lg=0)
        a('s_barrier')
        for o2 in row_part2(): a(o2)
        a.label(f'L_xg{lab}')
        a.restore(st)
    if 'noprio' not in exp:
        a(f's_cmp_lt_u32 s{S_WAVE}, 4')
        a('s_cbranch_scc1 L_pr1')
        a('s_setprio 1')
        a.label('L_pr1')
    while ia < len(chA) or ib < len(chB0) or ic < len(chB1):
        for k in range(4):
            if ia < len(chA): a(chA[ia]); ia += 1
            if k < 3:
                if ib < len(chB0): a(chB0[ib]); ib += 1
                if ic < len(chB1): a(chB1[ic]); ic += 1
            if ia >= XG_POS and not xgdone:
                xgdone.append(1)
                xg_block('lt', 'b')
                stamp('row pub')
            if rp:
                o = rp.pop(0)
                if o == 'XG':
                    xg_block('ge', 'a')
                    continue
                a(o)
                if o.startswith('s_mov_b32 exec'):
                    while not o.endswith('-1'):
                        o = rp.pop(0); a(o)
    assert not rp
    a.allow_opsel = False
    stamp('kgen chains')
    a(f's_bfe_u32 s{S_T+10}, s{S_WAVE}, 0x10001')
    a(f's_and_b32 s{S_T+11}, s{S_WAVE}, 1')
    a(f's_mul_i32 s{S_T+12}, s{S_T+10}, {16*AB_ROW}')
    a(f's_add_u32 s{S_T+12}, s{S_T+12}, s{S_T+9}')
    a(f's_mul_i32 s{S_T+13}, s{S_T+11}, {16*AB_ROW}')
    a(f's_add_u32 s{S_T+13}, s{S_T+13}, s{S_T+9}')
    a(f's_add_u32 s{S_T+13}, s{S_T+13}, {21*AB_ROW}')
    a('v_and_b32 v40, 15, v1')
    a('v_lshrrev_b32 v41, 4, v1')
    a(f'v_mul_u32_u24 v42, {AB_ROW}, v40')
    a('v_lshl_add_u32 v42, v41, 4, v42')
    a(f'v_add_u32 v43, s{S_T+13}, v42')
    a(f'v_add_u32 v42, s{S_T+12}, v42')
    a('s_setprio 0')
    a.barrier()
    stamp('AB barrier')
    KF = 128
    def kread(k):
        b = KF + (k % 8) * 8
        a(f'ds_read_b128 v[{b}:{b+3}], v42 offset:{k*64}')
        a(f'ds_read_b128 v[{b+4}:{b+7}], v43 offset:{k*64}')
    for k in range(6): kread(k)
    a(f's_lshl_b32 s{S_T+11}, s{S_T+11}, 4')
    a(f'v_add_u32 v44, s{S_T+11}, v40')
    a(f's_cmp_ge_u32 s{S_WAVE}, 4')
    a(f's_cselect_b32 s{S_T+12}, 3072, 0')
    a(f's_add_u32 s{S_T+12}, s{S_T+12}, {L_TAB}')
    fill = ['v_lshlrev_b32 v45, 3, v44', 'v_lshl_add_u32 v45, v41, 2, v45', 'v_lshlrev_b32 v46, 2, v44', 'v_add_u32 v46, 256, v46',
            'v_cmp_eq_u32 vcc, 2, v41', 'v_lshlrev_b32 v47, 1, v44', 'v_add_u32 v48, 384, v47', 'v_cndmask_b32 v45, v45, v46, vcc',
            'v_add_u32 v46, 2, v45', 'v_cmp_eq_u32 vcc, 3, v41', 'v_add_u32 v47, 448, v47', 'v_mov_b32 v52, 0',
            'v_cndmask_b32 v45, v45, v48, vcc', 'v_cndmask_b32 v46, v46, v47, vcc',
            f'v_lshl_add_u32 v45, v45, 2, s{S_T+12}', f'v_lshl_add_u32 v46, v46, 2, s{S_T+12}',
            'v_lshlrev_b32 v47, 7, v41', 'v_add_u32 v47, v47, v44', 'v_add_u32 v47, 512, v47', f'v_lshl_add_u32 v47, v47, 2, s{S_T+12}',
            f'v_mov_b32 v53, {L_TAB + 767*4}', 'ds_write_b32 v53, v52', 'ds_write_b32 v53, v52 offset:3072']
    for k in range(16):
        b = KF + (k % 8) * 8
        a(f'v_mfma_f32_16x16x32_bf16 v[120:123], v[{b}:{b+3}], v[{b+4}:{b+7}], {"0" if k == 0 else "v[120:123]"}')
        if k + 6 < 16: kread(k + 6)
        for _ in range(2):
            if fill: a(fill.pop(0))

    assert not fill
    stamp('kmfma')
    st = a.snap()
    a(f's_cmp_lg_u32 s{S_T+10}, 0')
    a('s_cbranch_scc1 L_tab1')
    a('ds_write_b64 v45, v[120:121]')
    a('ds_write_b64 v46, v[122:123]')
    a('s_branch L_tab2')
    a.label('L_tab1')
    a.restore(st)
    a('s_mov_b64 exec, 0x1ffff')
    a('ds_write_b32 v47, v120')
    a('s_mov_b64 exec, 0xffff')
    for r in range(1, 4):
        a(f'ds_write_b32 v47, v{120+r} offset:{128*r}')
    a('s_mov_b64 exec, -1')
    a.label('L_tab2')
    a('v_and_b32 v50, 255, v0')
    a('v_lshlrev_b32 v49, 5, v0')
    a(f'v_add_u32 v49, {L_CK}, v49')
    a('v_lshlrev_b32 v50, 4, v50')
    a(f's_cmp_ge_u32 s{S_WAVE}, 4')
    a(f's_cselect_b32 s{S_T+9}, {L_KC + KC_CH + 48}, {L_KC + 48}')
    a(f'v_add_u32 v50, s{S_T+9}, v50')
    a('v_mov_b32 v56, 0'); a('v_mov_b32 v57, 0'); a('v_mov_b32 v58, 0'); a('v_mov_b32 v59, 0')
    a('v_and_b32 v51, 3, v1')
    a('v_min_u32 v51, 2, v51')
    a('v_lshrrev_b32 v52, 2, v1')
    a(f'v_mul_u32_u24 v52, {KC_COPY}, v52')
    a('v_lshl_add_u32 v51, v51, 4, v52')
    a('v_min_u32 v52, 14, v40')
    a(f'v_mul_u32_u24 v53, {U_PL}, v41')
    a('v_lshl_add_u32 v52, v52, 4, v53')
    a(f'v_add_u32 v52, {L_U}, v52')
    a.force_wait(lg=0)
    a('s_barrier')
    stamp('table barrier')
    if debug:
        a('v_lshlrev_b32 v54, 4, v0')
        a(f'v_min_u32 v54, {6144-16}, v54')
        a(f'v_add_u32 v55, {L_TAB}, v54')
        a(f'ds_read_b128 v[132:135], v55')
        a(f's_mul_i32 s{S_T+9}, s{S_D0}, 3072')
        a(f's_add_u32 s{S_T+9}, s{S_T+9}, {WS_DUMP}')
        a(f'buffer_store_dwordx4 v[132:135], v54, {WSR}, s{S_T+9} offen')
    EV = 60
    PG = 136
    a('s_mov_b64 exec, 1')
    for t in range(8, 15):
        a(f'ds_read_b32 v{EV+t}, v{GA+t}')
    a('s_mov_b64 exec, -1')
    for t in range(7, -1, -1):
        a(f'ds_read_b32 v{EV+t}, v{GA+t}')
    a('v_lshlrev_b32 v45, 5, v0')
    a(f's_mov_b32 s{S_T+16}, {WS_ST1}')
    a(f's_lshl_b32 s{S_T+17}, s{S_CP}, 14')
    a(f's_add_u32 s{S_T+17}, s{S_T+17}, {WS_XG}')
    def issue():
        a(f'buffer_load_dwordx4 v[{PG}:{PG+3}], v45, {WSR}, s{S_T+17} offen sc1')
        a(f'buffer_load_dwordx4 v[{PG+4}:{PG+7}], v45, {WSR}, s{S_T+17} offen offset:16 sc1')
        a(f'buffer_load_dwordx4 v[{PG+8}:{PG+11}], v45, {WSR}, s{S_T+16} offen sc1')
        a(f'buffer_load_dwordx4 v[{PG+12}:{PG+15}], v45, {WSR}, s{S_T+16} offen offset:16 sc1')
    issue()
    a(f's_mov_b32 s{S_T+11}, 0x05040100')
    a(f's_mov_b32 s{S_T+12}, 0x07060302')
    a.allow_opsel = True
    a(f'ds_write_b128 v51, v[56:59] offset:{L_KC}')
    a(f'ds_write_b128 v52, v[56:59]')
    a(f'ds_write_b128 v52, v[56:59] offset:{U_CH}')
    PS = 124
    a(f'v_mov_b32 v{PS}, v{EV+7}')
    for m in range(1, 8): a(f'v_add_f32 v{PS+m}, v{PS+m-1}, v{EV+7-m}')
    a(f'v_mov_b32 v122, v{PS+7}')
    for t in range(8, 15):
        a(f'v_mov_b32_dpp v{EV+t}, v{EV+t-8} wave_shr:1 row_mask:0xf bank_mask:0xf')
    for t in range(0, 6): a(f'v_cvt_pk_bf16_f32 v{76+t}, v{EV+2*t}, v{EV+2*t+1}')
    a(f'ds_write_b128 v50, v[76:79] offset:{7*KC_COPY}')
    a(f'v_add_f32_dpp v122, v122, v122 row_shr:1 row_mask:0xf bank_mask:0xf')
    a(f'ds_write_b128 v50, v[78:81] offset:{3*KC_COPY}')
    for t in range(1, 7): a(f'v_cvt_pk_bf16_f32 v{83+t}, v{EV+2*t}, v{EV+2*t+1}')
    a(f'v_add_f32_dpp v122, v122, v122 row_shr:2 row_mask:0xf bank_mask:0xf')
    a(f'ds_write_b128 v50, v[84:87] offset:{5*KC_COPY}')
    a(f'ds_write_b128 v50, v[86:89] offset:{1*KC_COPY}')
    a(f'v_add_f32_dpp v122, v122, v122 row_shr:4 row_mask:0xf bank_mask:0xf')
    for t in range(0, 6): a(f'v_cvt_pk_bf16_f32 v{90+t}, v{EV+2*t+1}, v{EV+2*t+2}')
    a(f'v_add_f32_dpp v122, v122, v122 row_shr:8 row_mask:0xf bank_mask:0xf')
    a(f'ds_write_b128 v50, v[90:93] offset:{6*KC_COPY}')
    a(f'ds_write_b128 v50, v[92:95] offset:{2*KC_COPY}')
    a(f'v_add_f32_dpp v122, v122, v122 row_bcast:15 row_mask:0xa bank_mask:0xf')
    for t in range(1, 7): a(f'v_cvt_pk_bf16_f32 v{115+t}, v{EV+2*t+1}, v{EV+2*t+2}')
    a(f'v_add_f32_dpp v122, v122, v122 row_bcast:31 row_mask:0xc bank_mask:0xf')
    a(f'ds_write_b128 v50, v[116:119] offset:{4*KC_COPY}')
    a(f'ds_write_b128 v50, v[118:121] offset:{0*KC_COPY}')
    a(f'v_sub_f32 v123, v122, v{PS+7}')
    a(f's_lshl_b32 s{S_T+9}, s{S_WAVE}, 2')
    a(f's_add_u32 s{S_T+9}, s{S_T+9}, {L_WT}')
    a(f'v_mov_b32 v53, s{S_T+9}')
    for m in range(0, 8, 2):
        a(f'v_pk_add_f32 v[{PS+m}:{PS+m+1}], v[{PS+m}:{PS+m+1}], v[122:123] op_sel:[0,1] op_sel_hi:[1,1]')
    a(f'ds_write_b128 v49, v[{PS}:{PS+3}]')
    a(f'ds_write_b128 v49, v[{PS+4}:{PS+7}] offset:16')
    a('s_mov_b32 exec_lo, 0')
    a('s_mov_b32 exec_hi, 0x80000000')
    a('ds_write_b32 v53, v122')
    a('s_mov_b64 exec, -1')
    stamp('expanded')
    a('v_lshrrev_b32 v46, 3, v0')
    a('v_bfe_u32 v47, v0, 1, 2')
    a('v_and_b32 v48, 1, v0')
    a('v_lshlrev_b32 v48, 3, v48')
    a('v_lshl_add_u32 v48, v46, 4, v48')
    a(f'v_mul_u32_u24 v46, {U_PL}, v47')
    a(f'v_add_u32 v46, v46, v48')
    a(f'v_add_u32 v46, {L_U + 15*16}, v46')
    a(f'v_lshl_add_u32 v47, v47, 10, v48')
    a(f'v_add_u32 v47, {L_XL}, v47')
    CH, PP, HFF = S_T + 5, S_T + 6, S_T + 7
    a(f's_lshr_b32 s{CH}, s{S_WAVE}, 2')
    a(f's_bfe_u32 s{PP}, s{S_WAVE}, 0x10001')
    a(f's_and_b32 s{HFF}, s{S_WAVE}, 1')
    a(f's_mul_i32 s{S_T+13}, s{CH}, {U_CH}')
    a(f's_lshl_b32 s{S_T+14}, s{PP}, 4')
    a(f's_sub_u32 s{S_T+13}, s{S_T+13}, s{S_T+14}')
    a(f's_add_u32 s{S_T+13}, s{S_T+13}, {L_U + 16}')
    a(f'v_mul_u32_u24 v42, {U_PL}, v41')
    a('v_lshl_add_u32 v42, v40, 4, v42')
    a(f'v_add_u32 v43, s{S_T+13}, v42')
    a(f's_mul_i32 s{S_T+13}, s{CH}, {KC_CH}')
    a(f's_mul_i32 s{S_T+14}, s{HFF}, {4*KC_COPY}')
    a(f's_add_u32 s{S_T+13}, s{S_T+13}, s{S_T+14}')
    a(f's_lshl_b32 s{S_T+14}, s{PP}, 6')
    a(f's_add_u32 s{S_T+13}, s{S_T+13}, s{S_T+14}')
    a(f's_add_u32 s{S_T+13}, s{S_T+13}, {L_KC + 48}')
    a('v_and_b32 v44, 3, v40')
    a(f'v_mul_u32_u24 v44, {KC_COPY}, v44')
    a('v_lshrrev_b32 v49, 2, v40')
    a('v_sub_u32 v49, v49, v41')
    a('v_lshl_add_u32 v44, v49, 4, v44')
    a(f'v_add_u32 v44, s{S_T+13}, v44')
    a('v_min_u32 v50, 3, v1')
    a('v_lshrrev_b32 v51, 1, v50')
    a('v_and_b32 v51, v51, v50')
    a('v_add_u32 v50, v50, v51')
    a('v_mul_u32_u24 v50, 1792, v50')
    a(f's_lshl_b32 s{S_T+8}, s{S_CP}, 3')
    a(f's_add_u32 s{S_T+8}, s{S_T+8}, {WS_MODP}')
    a(f's_and_b32 s{S_T+13}, s{S_RT}, 7')
    a(f's_lshl_b32 s{S_T+13}, s{S_T+13}, 2')
    a(f's_and_b32 s{S_T+14}, s{S_WAVE}, 3')
    a(f's_add_u32 s{S_T+13}, s{S_T+13}, s{S_T+14}')
    a(f's_mul_i32 s{S_T+13}, s{S_T+13}, {14*3584}')
    a(f's_lshl_b32 s{S_T+14}, s{S_S}, 9')
    a(f's_add_u32 s{S_FLAG}, s{S_T+13}, s{S_T+14}')
    a('v_lshrrev_b32 v51, 5, v1')
    a('v_mul_u32_u24 v51, 3584, v51')
    a('v_and_b32 v52, 31, v1')
    a('v_lshl_add_u32 v51, v52, 4, v51')
    a(f's_cmp_ge_u32 s{S_WAVE}, 4')
    a(f's_cselect_b32 s{SRD_A}, s{P_WU}, s{P_WG}')
    a(f's_cselect_b32 s{SRD_A+1}, s{P_WU+1}, s{P_WG+1}')
    a(f's_mov_b32 s{SRD_A+2}, {448*3584}')
    def issue_mod():
        a(f'buffer_load_dwordx2 v[54:55], v50, {WSR}, s{S_T+8} offen sc1')
    def check():
        a(f'v_xor_b32 v76, s{S_TAG}, v{PG+1}')
        for k in range(7):
            a(f'v_xor_b32 v{77 + (k & 1)}, s{S_TAG}, v{PG+3+2*k}')
            if k & 1: a('v_or3_b32 v76, v76, v77, v78')
        a('v_or_b32 v76, v76, v77')
        a('v_cmp_ne_u32 vcc, 0, v76')
    check()
    a('s_cbranch_vccz L_s1ok')
    st = a.snap()
    poll(issue, check)
    a.label('L_s1ok')
    a.restore(st)
    stamp('sync1')
    X0 = PG; M0_ = PG + 8
    for e in range(4):
        g = M0_ + 2 * e
        a(f'v_and_b32 v{76+e}, 0xffff0000, v{g}')
        a(f'v_lshlrev_b32 v{g}, 16, v{g}')
        a(f'v_rcp_f32 v{76+e}, v{76+e}')
    a(f'v_perm_b32 v80, v{X0+2}, v{X0}, s{S_T+11}')
    a(f'v_perm_b32 v81, v{X0+6}, v{X0+4}, s{S_T+11}')
    a(f'v_perm_b32 v82, v{X0+2}, v{X0}, s{S_T+12}')
    a(f'v_perm_b32 v83, v{X0+6}, v{X0+4}, s{S_T+12}')
    a(f'ds_write_b64 v47, v[80:81]')
    a(f'ds_write_b64 v47, v[82:83] offset:{XL_CH}')
    for e in range(4):
        a(f'v_and_b32 v{X0+1+2*e}, 0xffff0000, v{X0+2*e}')
        a(f'v_lshlrev_b32 v{X0+2*e}, 16, v{X0+2*e}')
    for e in range(4):
        a(f'v_pk_add_f32 v[{X0+2*e}:{X0+1+2*e}], v[{X0+2*e}:{X0+1+2*e}], v[{M0_+2*e}:{M0_+1+2*e}] op_sel_hi:[1,0] neg_lo:[0,1] neg_hi:[0,1]')
    for e in range(4):
        b = 76 + (e & ~1)
        a(f'v_pk_mul_f32 v[{X0+2*e}:{X0+1+2*e}], v[{X0+2*e}:{X0+1+2*e}], v[{b}:{b+1}] op_sel:[0,{e&1}] op_sel_hi:[1,{e&1}]')
    a(f'v_cvt_pk_bf16_f32 v84, v{X0}, v{X0+2}')
    a(f'v_cvt_pk_bf16_f32 v85, v{X0+4}, v{X0+6}')
    a(f'v_cvt_pk_bf16_f32 v86, v{X0+1}, v{X0+3}')
    a(f'v_cvt_pk_bf16_f32 v87, v{X0+5}, v{X0+7}')
    a(f'ds_write_b64 v46, v[84:85]')
    a(f'ds_write_b64 v46, v[86:87] offset:{U_CH}')
    a.allow_opsel = False
    a.barrier()
    stamp('n barrier')
    CF = 128; CACC = 200
    def cread(it):
        b = CF + (it & 1) * 32
        order = [('F', 0), ('G', 0), ('G', 1), ('G', 2), ('G', 3), ('F', 1), ('F', 2), ('F', 3)]
        out = []
        for k, i in order:
            if k == 'F':
                out.append(f'ds_read_b128 v[{b+4*i}:{b+4*i+3}], v44 offset:{(8*it + 64*i)*16}')
            else:
                out.append(f'ds_read_b128 v[{b+16+4*i}:{b+16+4*i+3}], v43 offset:{(16*i + 14 - 2*it)*16}')
        return out
    for o in cread(0): a(o)
    MOD_AT = int(os.environ.get('MOD_AT', 0))
    IS = S_T + 6
    fill = [f's_and_b32 s{IS}, s{S_WAVE}, 3',
            f's_lshl_b32 s{S_T+12}, s{CH}, 14', f's_add_u32 s{S_T+12}, s{S_T+12}, {L_EX}',
            f's_lshl_b32 s{S_T+14}, s{IS}, 10', f's_add_u32 s{S_T+14}, s{S_T+14}, s{S_T+12}', f'v_add_u32 v45, s{S_T+14}, v2',
            f's_lshl_b32 s{S_T+14}, s{IS}, 12', f's_add_u32 s{S_T+14}, s{S_T+14}, s{S_T+12}', f'v_add_u32 v46, s{S_T+14}, v2',
            f's_mul_i32 s{S_T+12}, s{CH}, {U_CH}', f's_lshl_b32 s{S_T+14}, s{IS}, 8', f's_add_u32 s{S_T+12}, s{S_T+12}, s{S_T+14}',
            f's_add_u32 s{S_T+12}, s{S_T+12}, {L_U + 15*16}', f'v_add_u32 v47, s{S_T+12}, v42',
            f's_lshl_b32 s{S_T+12}, s{CH}, 12', f's_add_u32 s{S_T+12}, s{S_T+12}, s{S_T+14}', f's_add_u32 s{S_T+12}, s{S_T+12}, {L_XL}',
            'v_lshlrev_b32 v48, 4, v40', 'v_lshl_add_u32 v48, v41, 10, v48', f'v_add_u32 v48, s{S_T+12}, v48',
            f's_lshl_b32 s{S_T+12}, s{S_WAVE}, 11', f's_add_u32 s{S_T+12}, s{S_T+12}, {L_CK}',
            'v_lshlrev_b32 v49, 7, v40', 'v_lshl_add_u32 v49, v41, 5, v49', f'v_add_u32 v49, s{S_T+12}, v49',
            f's_lshl_b32 s{S_T+12}, s{CH}, 4', f's_add_u32 s{S_T+12}, s{S_T+12}, {L_WT}', f'v_mov_b32 v52, s{S_T+12}',
            f's_add_u32 s{S_T+12}, s{S_D0}, s{CH}', f's_lshl_b32 s{S_T+12}, s{S_T+12}, 12', f's_lshl_b32 s{S_T+14}, s{IS}, 10',
            f's_add_u32 s{S_T+12}, s{S_T+12}, s{S_T+14}', f's_add_u32 s{S_T+13}, s{S_T+12}, {WS_AT}', f's_add_u32 s{S_T+12}, s{S_T+12}, {WS_X1T}',
            'v_lshlrev_b32 v53, 6, v40', 'v_lshl_add_u32 v53, v41, 4, v53',
            f's_cmp_gt_u32 s{IS}, 0', f's_cselect_b32 s{S_T+9}, 1.0, 0', f's_cmp_gt_u32 s{IS}, 1', f's_cselect_b32 s{S_T+10}, 1.0, 0',
            f's_cmp_gt_u32 s{IS}, 2', f's_cselect_b32 s{S_T+11}, 1.0, 0']
    for it in range(8):
        b = CF + (it & 1) * 32
        nxt = cread(it + 1) if it < 7 else []
        k = 0
        for e in range(4):
            for i in range(e, 4):
                c = '0' if (it == 0 and e == 0) else f'v[{CACC+4*i}:{CACC+4*i+3}]'
                a(f'v_mfma_f32_16x16x32_bf16 v[{CACC+4*i}:{CACC+4*i+3}], v[{b+4*e}:{b+4*e+3}], v[{b+16+4*(i-e)}:{b+16+4*(i-e)+3}], {c}')
                if k < len(nxt): a(nxt[k]); k += 1
                elif fill and it > 0:
                    a(fill.pop(0))
                    if fill and fill[0].startswith('s_'): a(fill.pop(0))
                    if fill and fill[0].startswith('s_'): a(fill.pop(0))
        if it == MOD_AT: issue_mod()
        if it < 4 and 'nowarm' not in exp:
            for z in range(2 if it < 3 else 1):
                a(f'buffer_load_dwordx4 v[{220+8*it+4*z}:{223+8*it+4*z}], v51, {AR}, s{S_FLAG} offen')
                a(f's_add_u32 s{S_FLAG}, s{S_FLAG}, {2*3584}')
    while fill: a(fill.pop(0))
    stamp('conv done')
    a(f'ds_read_b128 v[60:63], v47')
    a(f'ds_read_b128 v[64:67], v48')
    a(f'ds_read_b128 v[100:103], v49')
    a(f'ds_read_b128 v[104:107], v49 offset:16')
    a(f'ds_read_b128 v[108:111], v52')
    for i in range(4):
        a(f'ds_write_b128 v45, v[{CACC+4*i}:{CACC+4*i+3}] offset:{4096*i}')
    a(f'v_cmp_ne_u32 vcc, s{S_TAG}, v55')
    a('s_cbranch_vccz L_modok')
    st = a.snap()
    poll(issue_mod, lambda: a(f'v_cmp_ne_u32 vcc, s{S_TAG}, v55'))
    a.label('L_modok')
    a.restore(st)
    stamp('mod seen')
    a('v_lshlrev_b32 v58, 16, v54')
    a('v_and_b32 v59, 0xffff0000, v54')
    a(f's_cmp_ge_u32 s{S_WAVE}, 4')
    a('s_cselect_b64 vcc, -1, 0')
    a('v_cndmask_b32 v58, v58, v59, vcc')
    SA, CA1, GA_, CB1_ = S_T + 14, S_T + 16, S_T + 17, S_T + 7
    a(f'v_readlane_b32 s{SA}, v58, 0')
    a(f'v_readlane_b32 s{CA1}, v58, 1')
    a(f'v_readlane_b32 s{GA_}, v58, 2')
    a(f'v_readlane_b32 s{CB1_}, v58, 3')
    for i in range(4):
        a(f'v_lshlrev_b32 v{84+2*i}, 16, v{60+i}')
        a(f'v_and_b32 v{85+2*i}, 0xffff0000, v{60+i}')
        a(f'v_lshlrev_b32 v{92+2*i}, 16, v{64+i}')
        a(f'v_and_b32 v{93+2*i}, 0xffff0000, v{64+i}')
    a(f'v_mov_b32 v112, s{GA_}')
    a(f'v_mul_f32 v118, s{SA}, v112')
    a(f'v_mul_f32 v112, s{CA1}, v112')
    a(f'v_mov_b32 v120, s{S_DK}')
    a(f'v_mul_f32 v114, v112, v120')
    a(f'v_fmac_f32 v120, s{S_T+9}, v108')
    a(f'v_fmac_f32 v120, s{S_T+10}, v109')
    a(f'v_fmac_f32 v120, s{S_T+11}, v110')
    a(f'v_mul_f32 v120, v118, v120')
    a(f'v_mov_b32 v116, s{CB1_}')
    for r in range(0, 8, 2):
        a(f'v_pk_fma_f32 v[{92+r}:{93+r}], v[{84+r}:{85+r}], v[114:115], v[{92+r}:{93+r}] op_sel_hi:[1,0,1]')
    for r in range(0, 8, 2):
        a(f'v_pk_fma_f32 v[{92+r}:{93+r}], v[{100+r}:{101+r}], v[118:119], v[{92+r}:{93+r}] op_sel_hi:[1,0,1]')
    for r in range(0, 8, 2):
        a(f'v_pk_add_f32 v[{92+r}:{93+r}], v[{92+r}:{93+r}], v[120:121] op_sel_hi:[1,0]')
    a.force_wait(lg=0)
    a('s_barrier')
    for i in range(4):
        a(f'ds_read_b128 v[{68+4*i}:{71+4*i}], v46 offset:{1024*i}')
    for r in range(0, 8, 2):
        a(f'v_pk_fma_f32 v[{92+r}:{93+r}], v[{68+r}:{69+r}], v[112:113], v[{92+r}:{93+r}] op_sel_hi:[1,0,1]')
    for r in range(0, 8, 2):
        a(f'v_pk_fma_f32 v[{92+r}:{93+r}], v[{76+r}:{77+r}], v[112:113], v[{92+r}:{93+r}] op_sel_hi:[1,0,1]')
    for r in range(0, 8, 2):
        a(f'v_pk_mul_f32 v[{84+r}:{85+r}], v[{92+r}:{93+r}], v[116:117] op_sel_hi:[1,0]')
    for i in range(4):
        a(f'v_cvt_pk_bf16_f32 v{64+i}, v{84+2*i}, v{85+2*i}')
    a(f'buffer_store_dwordx4 v[64:67], v53, {WSR}, s{S_T+13} offen sc1')
    for i in range(4):
        a(f'v_cvt_pk_bf16_f32 v{60+i}, v{92+2*i}, v{93+2*i}')
    a(f'buffer_store_dwordx4 v[60:63], v53, {WSR}, s{S_T+12} offen sc1')
    stamp('x1 stored')
    RING0 = 112; NSLOT = 35; NPRE = int(os.environ.get('NPRE', 24))
    def slot(i): return RING0 + 4 * i
    a(f's_lshl_b32 s{S_T}, s{S_S}, 9')
    a(f's_lshl_b32 s{S_T+9}, s{S_WAVE}, 6')
    a(f's_add_u32 s{S_T}, s{S_T}, s{S_T+9}')
    def wsrc_addr(r, t):
        a(f'v_lshrrev_b32 v{r}, 2, v1')
        a(f'v_mul_u32_u24 v{r}, 3584, v{r}')
        a(f'v_and_b32 v{t}, 3, v1')
        a(f'v_lshl_add_u32 v{r}, v{t}, 4, v{r}')
    def wtr_addr(r, t):
        a(f'v_lshrrev_b32 v{r}, 5, v1')
        a(f'v_bfe_u32 v{t}, v1, 2, 2')
        a(f'v_lshl_add_u32 v{r}, v{r}, 3, v{t}')
        a(f'v_lshlrev_b32 v{r}, 6, v{r}')
        a(f'v_bfe_u32 v{t}, v1, 4, 1')
        a(f'v_lshl_add_u32 v{r}, v{t}, 5, v{r}')
        a(f'v_and_b32 v{t}, 3, v1')
        a(f'v_lshl_add_u32 v{r}, v{t}, 3, v{r}')
    wsrc_addr(24, 25)
    wtr_addr(25, 26)
    SA_, SR_, SH_ = S_X8, S_I, S_LDT
    a(f's_lshl_b32 s{SA_}, s{S_WAVE}, 10')
    a(f's_lshl_b32 s{SR_}, s{S_WAVE}, 13')
    a(f's_add_u32 s{SR_}, s{SR_}, {L_WR}')
    a(f's_lshl_b32 s{SH_}, s{S_WAVE}, 12')
    a(f's_add_u32 s{SH_}, s{SH_}, {L_HH}')
    a(f'v_add_u32 v26, s{SR_}, v25')
    a(f'v_add_u32 v27, s{SH_}, v25')
    a(f'v_add_u32 v25, s{SA_}, v25')
    TB = S_T + 1
    PB = S_T + 5
    def tb_calc(i):
        a(f's_lshl_b32 s{S_T+9}, s{S_S}, 2')
        a(f's_add_u32 s{S_T+9}, s{S_T+9}, {4 + 8*i}')
        a(f's_add_u32 s{S_T+9}, s{S_T+9}, s{S_WAVE}')
        a(f's_sub_u32 s{S_T+10}, s{S_T+9}, 28')
        a(f's_cmp_ge_u32 s{S_T+9}, 28')
        a(f's_cselect_b32 s{S_T+9}, s{S_T+10}, s{S_T+9}')
        a(f's_sub_u32 s{S_T+10}, s{S_T+9}, 28')
        a(f's_cmp_ge_u32 s{S_T+9}, 28')
        a(f's_cselect_b32 s{S_T+9}, s{S_T+10}, s{S_T+9}')
        a(f's_mul_i32 s{S_T+10}, s{S_S}, 28')
        a(f's_add_u32 s{S_T+10}, s{S_T+10}, s{S_T+9}')
        a(f's_lshl_b32 s{S_T+10}, s{S_T+10}, 13')
        a(f's_add_u32 s{TB+i}, s{S_T+10}, {WS_WDF}')
        if i == 3:
            return
        a(f's_mul_i32 s{S_T+10}, s{S_RT}, 7')
        a(f's_lshr_b32 s{S_T+11}, s{S_T+9}, 2')
        a(f's_add_u32 s{S_T+10}, s{S_T+10}, s{S_T+11}')
        a(f's_mul_i32 s{S_T+10}, s{S_T+10}, 7')
        a(f's_add_u32 s{S_T+10}, s{S_T+10}, s{S_S}')
        a(f's_lshl_b32 s{S_T+10}, s{S_T+10}, 2')
        a(f's_and_b32 s{S_T+11}, s{S_T+9}, 3')
        a(f's_add_u32 s{S_T+10}, s{S_T+10}, s{S_T+11}')
        a(f's_lshl_b32 s{S_T+10}, s{S_T+10}, 11')
        a(f's_add_u32 s{PB+i}, s{S_T+10}, {WS_PART}')
    tb_calc(0)
    NA = int(os.environ.get('NA', 19))
    def lslot(n):
        i = n if n < NA else 7 + (n - NA) % 12
        if n < NA: i = (list(range(7, 19)) + list(range(7)))[n]
        if i < 7: return SA_, 25, 8192 * i
        if i < 15: return SR_, 26, 1024 * (i - 7)
        return SH_, 27, 1024 * (i - 15)
    dma_mark = {}
    def w_dma(n):
        sb, _, off = lslot(n)
        if n >= NA: a.need({f'v{slot((n - 12 if n - 12 >= NA else (n - NA) % 12) % NSLOT) + z}' for z in range(4)})
        a(f's_add_u32 m0, s{sb}, {off}')
        srd = SRD_U if n & 1 else SRD_G
        a(f'buffer_load_dwordx4 v24, s[{srd}:{srd+3}], s{S_T} offen lds')
        dma_mark[n] = a.vm_mark()
        if n & 1: a(f's_add_u32 s{S_T}, s{S_T}, {16*3584}')
    def w_tr(n):
        _, vb, off = lslot(n)
        r = slot(n % NSLOT)
        return [('mark', n), f'ds_read_b64_tr_b16 v[{r}:{r+1}], v{vb} offset:{off}', f'ds_read_b64_tr_b16 v[{r+2}:{r+3}], v{vb} offset:{off+256}']
    def emit(o):
        if isinstance(o, tuple): a.wait_mark(dma_mark[o[1]])
        else: a(o)
    def prefetch():
        for n in range(NA): w_dma(n)
        for n in range(NA):
            for o in w_tr(n): emit(o)
            if 12 > n >= 2: w_dma(NA + n - 2)
        for n in range(NA + 10, NA + 12): w_dma(n)
    def arrive_s2():
        a('v_mov_b32 v40, 1')
        a(f's_and_b32 s{S_T+9}, s{S_CP}, 15')
        a(f's_lshl_b32 s{S_T+9}, s{S_T+9}, 8')
        a(f's_add_u32 s{S_T+9}, s{S_T+9}, {CNT_S2}')
        a('v_mov_b32 v41, 0')
        a('s_mov_b64 exec, 1')
        a(f'buffer_atomic_add v40, v41, {WSR}, s{S_T+9} offen sc1')
        a('s_mov_b64 exec, -1')
    a.force_wait(vm=0)
    a('s_barrier')
    st0 = a.snap()
    a(f's_cmp_lg_u32 s{S_WAVE}, 0')
    a('s_cbranch_scc1 L_s2a')
    arrive_s2()
    a.label('L_s2a')
    a.restore(st0)
    stamp('arrived')
    prefetch()
    stamp('prefetch issued')
    for i in range(1, 4): tb_calc(i)
    a(f's_cmp_ge_u32 s{S_WAVE}, 4')
    a(f's_cselect_b32 s{S_T+9}, s{SRD_WS+2}, 0')
    a(f'v_add_u32 v3, s{S_T+9}, v2')
    def dma_addr(r, t0, t1):
        a(f'v_lshrrev_b32 v{r}, 3, v1')
        a(f'v_and_b32 v{t0}, 7, v1')
        a(f'v_and_b32 v{t1}, 2, v{r}')
        a(f's_and_b32 s{S_T+9}, s{S_WAVE}, 1')
        a(f'v_or_b32 v{t1}, s{S_T+9}, v{t1}')
        a(f'v_lshlrev_b32 v{t1}, 1, v{t1}')
        a(f'v_xor_b32 v{t0}, v{t0}, v{t1}')
        a(f'v_lshlrev_b32 v{t0}, 4, v{t0}')
        a(f'v_lshl_add_u32 v{r}, v{r}, 12, v{t0}')
    def tr_addr():
        a('v_bfe_u32 v6, v1, 2, 2')
        a('v_lshrrev_b32 v7, 4, v1')
        a('v_lshl_add_u32 v5, v7, 3, v6')
        a('v_lshlrev_b32 v5, 7, v5')
        a('v_and_b32 v6, 2, v6')
        a('v_and_b32 v7, 1, v7')
        a('v_or_b32 v6, v6, v7')
        a('v_lshl_add_u32 v5, v6, 5, v5')
        a('v_and_b32 v6, 3, v1')
        a('v_lshl_add_u32 v5, v6, 3, v5')
    dma_addr(4, 5, 6)
    a('v_bfe_u32 v6, v1, 2, 2')
    a('v_lshrrev_b32 v7, 5, v1')
    a('v_lshl_add_u32 v5, v7, 3, v6')
    a('v_lshlrev_b32 v5, 7, v5')
    a('v_and_b32 v6, 2, v6')
    a('v_or_b32 v6, v6, v7')
    a('v_bfe_u32 v7, v1, 4, 1')
    a('v_xor_b32 v6, v6, v7')
    a('v_lshl_add_u32 v5, v6, 5, v5')
    a('v_and_b32 v6, 3, v1')
    a('v_lshl_add_u32 v5, v6, 3, v5')
    a('v_xor_b32 v6, 64, v5')
    a('v_lshlrev_b32 v9, 3, v1')
    a(f's_lshl_b32 s{S_T+12}, s{S_WAVE}, 15')
    a(f's_lshl_b32 s{S_T+10}, s{S_RT}, 7')
    a(f's_add_u32 s{S_T+12}, s{S_T+12}, s{S_T+10}')
    a(f's_lshl_b32 s{S_T+13}, s{S_S}, 18')
    a(f's_add_u32 s{S_T+13}, s{S_T+13}, s{S_T+12}')
    a(f's_add_u32 s{S_T+13}, s{S_T+13}, {WS_X1T}')
    a(f's_add_u32 s{S_T+12}, s{S_T+12}, {WS_AT}')
    a(f's_lshl_b32 s{S_T+14}, s{S_WAVE}, 10')
    a(f's_lshl_b32 s{S_T+16}, s{S_RT}, 9')
    a(f's_add_u32 s{S_T+16}, s{S_T+16}, {WS_ST2}')
    def sync2_wait(lab):
        st = a.snap()
        a(f's_cmp_lg_u32 s{S_WAVE}, 0')
        a(f's_cbranch_scc1 {lab}')
        a('v_lshlrev_b32 v13, 8, v1')
        a(f's_mov_b32 s{S_T+9}, {CNT_S2}')
        a('s_mov_b64 exec, 0xffff')
        poll(lambda: a(f'buffer_load_dword v14, v13, {WSR}, s{S_T+9} offen sc1'),
             lambda: a('v_cmp_ne_u32 vcc, 14, v14'))
        a('s_mov_b64 exec, -1')
        return st
    st = sync2_wait('L_s2b')
    a('s_cmp_lg_u32 s2, 0')
    a('s_cbranch_scc1 L_s2b')
    a(f'v_mov_b32 v14, s{S_TAG}')
    a('v_mov_b32 v13, 0')
    a('s_mov_b64 exec, 1')
    a(f'buffer_store_dword v14, v13, {WSR}, 0 offen sc1')
    a('s_mov_b64 exec, -1')
    a.label('L_s2b')
    a.restore(st)
    a.barrier()
    stamp('sync2')
    for i in range(7):
        a(f's_add_u32 m0, s{S_T+14}, {L_AT + 8192*i}')
        a(f'buffer_load_dwordx4 v4, {WSR}, s{S_T+12} offen sc1 lds')
        if i < 6:
            a(f's_add_u32 s{S_T+12}, s{S_T+12}, {8*32768}')
    a(f's_add_u32 m0, s{S_T+14}, {L_XS}')
    a(f'buffer_load_dwordx4 v4, {WSR}, s{S_T+13} offen sc1 lds')
    a.force_wait(vm=0)
    a('s_barrier')
    stamp('tile loaded')
    a('v_min_u32 v8, 27, v1')
    a('v_and_b32 v7, 0x18, v8')
    a('v_lshlrev_b32 v7, 4, v7')
    a('v_and_b32 v8, 7, v8')
    a('v_lshl_add_u32 v7, v8, 2, v7')
    a(f'v_add_u32 v7, {WS_FW}, v7')
    a(f's_lshl_b32 s{S_T+14}, s{S_S}, 3')
    a(f's_add_u32 s{S_T+14}, s{S_T+14}, s{S_WAVE}')
    a(f's_lshl_b32 s{S_T+14}, s{S_T+14}, 11')
    a(f's_add_u32 s{S_T+14}, s{S_T+14}, {WS_WC}')
    ACC = 32; XF = 96
    def xread(k):
        b = XF + (k & 1) * 8
        return [f'ds_read_b64_tr_b16 v[{b+4*lt+2*h}:{b+4*lt+2*h+1}], v{5+lt} offset:{L_AT + k*2048 + h*512}' for lt in range(2) for h in range(2)]
    wd_list = [(i, kap) for i in range(4) for kap in range(8)]
    wd_slot = {}
    wd_next = [0]
    free_wd = []
    def issue_wd():
        if wd_next[0] >= len(wd_list) or not free_wd: return False
        i, kap = wd_list[wd_next[0]]
        r = free_wd.pop(0)
        wd_slot[(i, kap)] = r
        if kap == 4:
            a(f's_add_u32 s{TB+i}, s{TB+i}, 4096')
        a(f'buffer_load_dwordx4 v[{r}:{r+3}], v{3 if i == 3 else 2}, {WSR}, s{TB+i} offen offset:{(kap % 4)*1024} sc1')
        wd_next[0] += 1
        return True
    for o in xread(0): a(o)
    cr = [slot(21), slot(22)]
    def issue_c():
        for f in range(2): a(f'buffer_load_dwordx4 v[{cr[f]}:{cr[f]+3}], v2, {WSR}, s{S_T+14} offen offset:{f*1024} sc1')
    def issue_st2():
        a(f'buffer_load_dwordx2 v[10:11], v9, {WSR}, s{S_T+16} offen sc1')
    side = {}
    WD_START = int(os.environ.get('WD_START', 13)); WDL_START = WD_START
    CR = [96 + 16 * 0 + 0, 0]
    tr_next = [NA]; dma_next = [NA + 12]
    side[1] = [f'v_mov_b32 v{17+2*z}, 0' for z in range(4)]
    side[24] = ['v_mov_b32 v12, v10', 'v_lshlrev_b32 v13, 4, v1', 'v_permlane32_swap_b32 v10, v12', 'v_and_b32 v14, 0xf00, v13']
    for lt, r in ((0, 10), (1, 12)):
        side[25 + lt] = [f'v_and_b32 v15, 0xffff0000, v{r}', f'v_lshrrev_b32 v{18+4*lt}, 16, v{r}', f'v_and_b32 v{16+4*lt}, 0xffff, v{r}', 'v_mul_f32 v11, v15, v15',
                         f'v_or_b32 v{18+4*lt}, v{18+4*lt}, v15', f'v_lshl_or_b32 v{16+4*lt}, v{r}, 16, v{16+4*lt}', f'v_rcp_f32 v{r}, v11']
    side[27] = ['v_and_b32 v13, 0xf0, v13', 'v_and_b32 v15, 0x100, v14', 'v_lshl_add_u32 v13, v15, 2, v13', 'v_lshrrev_b32 v14, 9, v14',
                'v_lshl_add_u32 v14, v14, 8, v13', f's_lshl_b32 s{S_T+9}, s{S_WAVE}, 12', f's_add_u32 s{S_T+9}, s{S_T+9}, {L_HH}',
                f'v_add_u32 v14, s{S_T+9}, v14', f'v_add_u32 v15, {L_HH}, v2']
    for k in range(28):
        b = XF + (k & 1) * 8
        nx = xread(k + 1) if k < 27 else []
        sd = side.get(k, [])
        if k == WDL_START - 4:
            a(f'buffer_load_dword v8, v7, {WSR}, 0 offen sc1')
        if k == WDL_START:
            a(f'v_cmp_ne_u32 vcc, s{S_TAG}, v8')
            a('s_cbranch_vccz L_dok')
            st = a.snap()
            poll(lambda: a(f'buffer_load_dword v8, v7, {WSR}, 0 offen sc1'), lambda: a(f'v_cmp_ne_u32 vcc, s{S_TAG}, v8'), sleep=2)
            a.label('L_dok')
            a.restore(st)
        if k == 18:
            issue_st2()
            issue_c()
        if k == 24:
            a(f'v_cmp_ne_u32 vcc, s{S_TAG}, v11')
            a('s_cbranch_vccz L_st2ok')
            st = a.snap()
            poll(issue_st2, lambda: a(f'v_cmp_ne_u32 vcc, s{S_TAG}, v11'))
            a.label('L_st2ok')
            a.restore(st)
        if k == 23:
            def cchk():
                a(f'v_xor_b32 v12, s{S_TAG}, v{cr[0]+1}')
                a(f'v_xor_b32 v13, s{S_TAG}, v{cr[0]+3}')
                a(f'v_xor_b32 v14, s{S_TAG}, v{cr[1]+1}')
                a(f'v_xor_b32 v15, s{S_TAG}, v{cr[1]+3}')
                a('v_or3_b32 v12, v12, v13, v14')
                a('v_or_b32 v12, v12, v15')
                a('v_cmp_ne_u32 vcc, 0, v12')
            cchk()
            a('s_cbranch_vccz L_cok')
            st = a.snap()
            poll(issue_c, cchk)
            a.label('L_cok')
            a.restore(st)
            sd = sd + [f'v_mov_b32 v{c+o}, 0' for c in cr for o in (1, 3)]
        per = -(-len(sd) // 4)
        wt = []
        for m in range(2):
            if tr_next[0] < 56:
                wt.append(w_tr(tr_next[0])); tr_next[0] += 1
        for m in range(2):
            n = 2 * k + m
            r = slot(n % NSLOT)
            for lt in range(2):
                acc = ACC + 32 * m + 16 * lt
                c = '0' if k == 0 else f'v[{acc}:{acc+15}]'
                a(f'v_mfma_f32_32x32x16_bf16 v[{acc}:{acc+15}], v[{r}:{r+3}], v[{b+4*lt}:{b+4*lt+3}], {c}')
                if nx: a(nx.pop(0))
                if m < len(wt):
                    emit(wt[m].pop(0))
                    if lt == 0: emit(wt[m].pop(0))
                for _ in range(per):
                    if sd: a(sd.pop(0))
            if k > 0 and dma_next[0] < 56:
                w_dma(dma_next[0]); dma_next[0] += 1
            if n + NSLOT >= 58 and r >= 176:
                free_wd.append(r)
            if k >= WD_START: issue_wd()
        if k == 12: stamp('clk0', clk=True)
        if k == 13: stamp('g1 k6')
        if k == 21: stamp('clk1', clk=True)
        if k == 22: stamp('g1 k11')
        assert not sd and not nx
    stamp('gemm1')
    for m in range(2):
        r = cr[m]
        for lt in range(2):
            acc = ACC + 32 * m + 16 * lt
            a(f'v_mfma_f32_32x32x16_bf16 v[{acc}:{acc+15}], v[{r}:{r+3}], v[{16+4*lt}:{19+4*lt}], v[{acc}:{acc+15}]')
        free_wd.append(r)
        issue_wd()
    for lt in range(2):
        g = ACC + 16 * lt; u = ACC + 32 + 16 * lt
        for i in range(0, 16, 2):
            a(f'v_pk_mul_f32 v[{g+i}:{g+i+1}], v[{g+i}:{g+i+1}], v[{u+i}:{u+i+1}]')
        for i in range(0, 16, 2):
            a(f'v_pk_mul_f32 v[{g+i}:{g+i+1}], v[{g+i}:{g+i+1}], v[{10+2*lt}:{11+2*lt}] op_sel_hi:[1,0]')
        for i in range(8):
            a(f'v_cvt_pk_bf16_f32 v{u+i}, v{g+2*i}, v{g+2*i+1}')
        a(f'ds_write_b128 v14, v[{u}:{u+3}] offset:{2048*lt}')
        a(f'ds_write_b128 v14, v[{u+4}:{u+7}] offset:{2048*lt + 512}')
    a.barrier()
    stamp('hh barrier')
    HF = 32
    def hread(kap):
        return [f'ds_read_b128 v[{HF+(kap*4+u)*4}:{HF+(kap*4+u)*4+3}], v15 offset:{(kap*4+u)*1024}' for u in range(4)]
    for kap in range(3):
        for o in hread(kap): a(o)
    A2 = [160, 16]
    def publish(i):
        acc = A2[i & 1]
        for k in range(8):
            a(f'v_cvt_pk_bf16_f32 v{8+k}, v{acc+2*k}, v{acc+2*k+1}')
        a(f'buffer_store_dwordx4 v[8:11], v2, {WSR}, s{PB+i} offen sc1')
        a(f'buffer_store_dwordx4 v[12:15], v2, {WSR}, s{PB+i} offen offset:1024 sc1')
    def tile(i, issue=True):
        acc = A2[i & 1]
        for kap in range(8):
            r = wd_slot[(i, kap)]
            hr = hread(kap + 3) if (i == 0 and kap + 3 < 8) else []
            for u in range(4):
                h = HF + (kap * 4 + u) * 4
                c = '0' if kap == 0 else f'v[{acc+4*u}:{acc+4*u+3}]'
                a(f'v_mfma_f32_16x16x32_bf16 v[{acc+4*u}:{acc+4*u+3}], v[{r}:{r+3}], v[{h}:{h+3}], {c}')
                if hr: a(hr.pop(0))
            if issue:
                free_wd.append(r)
                issue_wd()
            if kap == 2 and 0 < i < 3:
                publish(i - 1)
    for i in range(3): tile(i)
    stamp('gemm2 r012')
    publish(2)
    a.force_wait(vm=0)
    a('s_barrier')
    stamp('part drained')
    a(f's_lshl_b32 s{S_T+9}, s{S_RT}, 8')
    a(f's_add_u32 s{S_T+9}, s{S_T+9}, {CNT_G}')
    a('v_mov_b32 v9, 0')
    a(f's_and_b32 s{S_T+8}, s{S_WAVE}, 3')
    a(f's_lshl_b32 s{S_T+10}, s{S_S}, 2')
    a(f's_add_u32 s{S_T+10}, s{S_T+10}, s{S_T+8}')
    a(f's_lshl_b32 s{S_T+11}, s{S_T+10}, 6')
    a(f's_add_u32 s{S_T+11}, s{S_T+11}, {WS_MODP + 5*1792}')
    a('v_lshrrev_b32 v5, 4, v1')
    a('v_lshlrev_b32 v10, 4, v5')
    a(f's_lshl_b32 s{S_T+12}, s{S_T+8}, 11')
    a(f's_add_u32 s{S_T+12}, s{S_T+12}, {L_AT}')
    a(f'v_lshl_add_u32 v11, v1, 5, s{S_T+12}')
    def issue_gb():
        a(f'buffer_load_dwordx4 v[12:15], v10, {WSR}, s{S_T+11} offen sc1')
    def fin_addr():
        a('v_bfe_u32 v4, v1, 2, 2')
        a('v_lshl_add_u32 v6, v5, 2, v4')
        a('v_lshlrev_b32 v6, 7, v6')
        a('v_and_b32 v4, 2, v4')
        a('v_lshrrev_b32 v7, 1, v5')
        a('v_or_b32 v4, v4, v7')
        a('v_lshl_add_u32 v6, v4, 5, v6')
        a('v_and_b32 v4, 3, v1')
        a('v_lshl_add_u32 v6, v4, 3, v6')
        a(f's_lshr_b32 s{S_T+13}, s{S_WAVE}, 2')
        a(f's_lshl_b32 s{S_T+14}, s{S_T+13}, 6')
        a(f'v_xor_b32 v6, s{S_T+14}, v6')
        a(f's_lshl_b32 s{S_T+12}, s{S_T+8}, 11')
        a(f's_add_u32 s{S_T+12}, s{S_T+12}, {L_XS}')
        a('v_xor_b32 v7, 32, v6')
        a(f'v_add_u32 v6, s{S_T+12}, v6')
        a(f'v_add_u32 v7, s{S_T+12}, v7')
        a(f's_mul_i32 s{S_T+12}, s{S_RT}, 7')
        a(f's_add_u32 s{S_T+12}, s{S_T+12}, s{S_S}')
        a(f's_mul_i32 s{S_T+12}, s{S_T+12}, {7*4*2048}')
        a(f's_lshl_b32 s{S_T+14}, s{S_T+8}, 11')
        a(f's_add_u32 s{S_T+12}, s{S_T+12}, s{S_T+14}')
        a(f's_lshl_b32 s{S_T+14}, s{S_T+13}, 10')
        a(f's_add_u32 s{S_T+12}, s{S_T+12}, s{S_T+14}')
        a(f's_add_u32 s{S_T+12}, s{S_T+12}, {WS_PART}')
        for j in range(6):
            a(f's_add_u32 s{S_T+j}, s{S_S}, {j+1}')
            a(f's_sub_u32 s{S_T+14}, s{S_T+j}, 7')
            a(f's_cmp_ge_u32 s{S_T+j}, 7')
            a(f's_cselect_b32 s{S_T+j}, s{S_T+14}, s{S_T+j}')
            a(f's_lshl_b32 s{S_T+j}, s{S_T+j}, 13')
            a(f's_add_u32 s{S_T+j}, s{S_T+j}, s{S_T+12}')
        a('v_and_b32 v4, 15, v1')
        a('v_mul_u32_u24 v4, 896, v4')
        a('v_lshl_add_u32 v4, v5, 3, v4')
        a(f's_lshl_b32 s{S_T+14}, s{S_RT}, 1')
        a(f's_add_u32 s{S_T+13}, s{S_T+13}, s{S_T+14}')
        a(f's_mul_i32 s{S_T+13}, s{S_T+13}, {32*896}')
        a(f's_lshl_b32 s{S_T+14}, s{S_T+10}, 5')
        a(f's_add_u32 s{S_T+13}, s{S_T+13}, s{S_T+14}')
        a(f's_mov_b32 s{SRD_A}, s{P_OUT}')
        a(f's_mov_b32 s{SRD_A+1}, s{P_OUT+1}')
        a(f's_mov_b32 s{SRD_A+2}, {2048*896}')
    acc = A2[1]
    st = a.snap()
    a(f's_cmp_ge_u32 s{S_WAVE}, 4')
    a('s_cbranch_scc1 L_fin47')
    a(f's_cmp_lg_u32 s{S_WAVE}, 0')
    a('s_cbranch_scc1 L_g1')
    a('v_mov_b32 v8, 1')
    a('s_mov_b64 exec, 1')
    a(f'buffer_atomic_add v8, v9, {WSR}, s{S_T+9} offen sc1')
    a('s_mov_b64 exec, -1')
    a.label('L_g1')
    a.restore(st)
    issue_gb()
    tile(3, issue=False)
    fin_addr()
    a(f'ds_write_b128 v11, v[{acc+8}:{acc+11}]')
    a(f'ds_write_b128 v11, v[{acc+12}:{acc+15}] offset:16')
    a.force_wait(lg=0)
    a('s_barrier')
    a('s_branch L_fin')
    a.label('L_fin47')
    a.restore(st)
    issue_gb()
    fin_addr()
    a(f's_cmp_lg_u32 s{S_WAVE}, 4')
    a('s_cbranch_scc1 L_g2')
    poll(lambda: a(f'buffer_load_dword v8, v9, {WSR}, s{S_T+9} offen sc1'), lambda: a('v_cmp_ne_u32 vcc, 7, v8'))
    a.label('L_g2')
    a('s_barrier')
    a(f'ds_read_b128 v[{acc}:{acc+3}], v11')
    a(f'ds_read_b128 v[{acc+4}:{acc+7}], v11 offset:16')
    a.label('L_fin')
    a.vm = [{f'v{r}' for r in range(12, 16)}]
    stamp('sync3')
    for j in range(6):
        a(f'buffer_load_dwordx4 v[{48+4*j}:{51+4*j}], v2, {WSR}, s{S_T+j} offen sc1')
    a('ds_read_b64_tr_b16 v[32:33], v6')
    a('ds_read_b64_tr_b16 v[34:35], v7')
    def check():
        a(f'v_xor_b32 v45, s{S_TAG}, v13')
        a(f'v_xor_b32 v46, s{S_TAG}, v15')
        a('v_or_b32 v45, v45, v46')
        a('v_cmp_ne_u32 vcc, 0, v45')
    check()
    a('s_cbranch_vccz L_gbok')
    st = a.snap()
    poll(issue_gb, check)
    a.label('L_gbok')
    a.restore(st)
    a('v_lshlrev_b32 v96, 16, v12'); a('v_and_b32 v97, 0xffff0000, v12')
    a('v_lshlrev_b32 v98, 16, v14'); a('v_and_b32 v99, 0xffff0000, v14')
    for k in range(4):
        a(f'v_lshlrev_b32 v{100+2*k}, 16, v{32+k}')
        a(f'v_and_b32 v{101+2*k}, 0xffff0000, v{32+k}')
    for j in range(6):
        for k in range(4):
            r = 48 + 4 * j + k
            t = 116 + 2 * (k & 1)
            a(f'v_lshlrev_b32 v{t}, 16, v{r}')
            a(f'v_and_b32 v{t+1}, 0xffff0000, v{r}')
            a(f'v_pk_add_f32 v[{acc+2*k}:{acc+2*k+1}], v[{acc+2*k}:{acc+2*k+1}], v[{t}:{t+1}]')
    for k in range(4):
        gbp = 96 + 2 * (k & 1)
        a(f'v_pk_fma_f32 v[{100+2*k}:{101+2*k}], v[{acc+2*k}:{acc+2*k+1}], v[{gbp}:{gbp+1}], v[{100+2*k}:{101+2*k}]')
    for u in range(2):
        a(f'v_cvt_pk_bf16_f32 v{48+2*u}, v{100+4*u}, v{101+4*u}')
        a(f'v_cvt_pk_bf16_f32 v{49+2*u}, v{102+4*u}, v{103+4*u}')
        a(f'buffer_store_dwordx2 v[{48+2*u}:{49+2*u}], v4, {AR}, s{S_T+13} offen')
        if u < 1: a(f's_add_u32 s{S_T+13}, s{S_T+13}, {16*896}')
    stamp('end')
    stamp_flush()
    a('s_endpgm')
    a.label('L_spare')
    a.allow_opsel = True
    a.restore(fork); prev[0], nst[0] = forkprev
    SJ = S_D0
    a(f's_sub_u32 s{SJ}, s2, 224')
    JB = S_CP
    def job_setup(beta):
        a(f's_add_u32 s{S_T+8}, s{beta}, 7')
        a(f's_cmp_lt_u32 s{beta}, 28')
        a(f's_cselect_b32 s{S_T+8}, s{S_T+8}, s{beta}')
        a(f's_cmp_lt_u32 s{beta}, 21')
        a(f's_cselect_b32 s{S_T+8}, s{beta}, s{S_T+8}')
        a(f's_sub_u32 s{S_T+9}, s{beta}, 28')
        a(f's_sub_u32 s{S_T+10}, s{beta}, 7')
        a(f's_cmp_lt_u32 s{S_T+9}, 7')
        a(f's_cselect_b32 s{JB}, s{S_T+10}, s{S_T+8}')
        a(f's_lshl_b32 s{S_T+8}, s{JB}, 7')
        a(f'v_add_u32 v11, s{S_T+8}, v12')
    def job_load(it):
        a(f'global_load_dwordx4 v[{64+4*it}:{67+4*it}], v11, s[{P_WM}:{P_WM+1}]{NT}')
        if it < 6: a(f'v_add_u32 v11, {8*5376}, v11')
    def wd_dma():
        a(f's_min_u32 s{S_W1D}, s{SJ}, 27')
        a(f's_mov_b32 s{SRD_A}, s{P_WD}')
        a(f's_mov_b32 s{SRD_A+1}, s{P_WD+1}')
        a(f's_mov_b32 s{SRD_A+2}, {1792*896}')
        a(f's_mul_i32 s{S_T+8}, s{S_W1D}, {56*1024}')
        a(f's_mul_i32 s{S_T+9}, s{S_WAVE}, {7*1024}')
        a(f's_add_u32 s{S_T+8}, s{S_T+8}, s{S_T+9}')
        for i in range(7):
            if i % 4 == 0:
                a(f's_add_u32 m0, s{S_T+9}, {16384 + 1024*i}')
                if i: a(f's_add_u32 s{S_T+8}, s{S_T+8}, 4096')
            a(f'buffer_load_dwordx4 v2, {AR}, s{S_T+8} offen offset:{1024*(i%4)}{NT} lds')
        mk_wdl = a.vm_mark()
    def job_compute(n):
        for e in range(8): a(f'v_mov_b32 v{24+e}, 0')
        for it in range(7):
            for k in range(4):
                t = 32 + 2 * (k & 1)
                a(f'v_lshlrev_b32 v{t}, 16, v{64+4*it+k}')
                a(f'v_and_b32 v{t+1}, 0xffff0000, v{64+4*it+k}')
                sb_ = 40 + (it & ~1)
                a(f'v_pk_fma_f32 v[{24+2*k}:{25+2*k}], v[{t}:{t+1}], v[{sb_}:{sb_+1}], v[{24+2*k}:{25+2*k}] op_sel:[0,{it&1},0] op_sel_hi:[1,{it&1},1]')
        if n == 0: wd_dma()
        for e in range(8):
            a(f'v_add_f32_dpp v{24+e}, v{24+e}, v{24+e} row_ror:8 row_mask:0xf bank_mask:0xf')
        for sw in ('v_permlane16_swap_b32', 'v_permlane32_swap_b32'):
            for e in range(8): a(f'v_mov_b32 v{32+e}, v{24+e}')
            for e in range(8): a(f'{sw} v{24+e}, v{32+e}')
            for e in range(0, 8, 2): a(f'v_pk_add_f32 v[{24+e}:{25+e}], v[{24+e}:{25+e}], v[{32+e}:{33+e}]')
        a(f's_lshl_b32 s{S_T+8}, s{S_WAVE}, 8')
        a(f's_add_u32 s{S_T+8}, s{S_T+8}, {4096 + 2048*(n&1)}')
        a(f'v_lshl_add_u32 v32, v1, 5, s{S_T+8}')
        a('s_mov_b64 exec, 0xff')
        a('ds_write_b128 v32, v[24:27]')
        a('ds_write_b128 v32, v[28:31] offset:16')
        a('s_mov_b64 exec, -1')
        a('v_lshlrev_b32 v32, 3, v1')
        a.barrier()
        st = a.snap()
        a(f's_cmp_lg_u32 s{S_WAVE}, 0')
        a(f's_cbranch_scc1 L_gv{n}')
        a('s_mov_b32 exec_hi, 0')
        for w in range(8):
            a(f'ds_read_b64 v[{48+2*w}:{49+2*w}], v32 offset:{4096 + 2048*(n&1) + 256*w}')
        a(f's_mul_i32 s{S_T+8}, s{JB}, 9363')
        a(f's_lshr_b32 s{S_T+8}, s{S_T+8}, 16')
        a(f's_cmp_eq_u32 s{S_T+8}, 1')
        a(f's_cselect_b32 s{S_T+9}, 1.0, 0')
        a(f's_cmp_eq_u32 s{S_T+8}, 4')
        a(f's_cselect_b32 s{S_T+9}, 1.0, s{S_T+9}')
        for w in range(1, 8):
            a(f'v_pk_add_f32 v[48:49], v[48:49], v[{48+2*w}:{49+2*w}]')
        a('v_cvt_pk_bf16_f32 v48, v48, v49')
        a('v_and_b32 v49, 0xffff0000, v48')
        a('v_lshlrev_b32 v48, 16, v48')
        a(f'v_add_f32 v48, s{S_T+9}, v48')
        a(f'v_add_f32 v49, s{S_T+9}, v49')
        a('v_cvt_pk_bf16_f32 v48, v48, v49')
        a(f'v_mov_b32 v49, s{S_TAG}')
        a(f's_lshl_b32 s{S_T+8}, s{JB}, 8')
        a(f's_add_u32 s{S_T+8}, s{S_T+8}, {WS_MODP}')
        a(f'buffer_store_dwordx2 v[48:49], v32, {WSR}, s{S_T+8} offen sc1')
        a('s_mov_b64 exec, -1')
        a.label(f'L_gv{n}')
        a.restore(st)
    a(f's_mul_i32 s{S_T+7}, s{S_WAVE}, 56')
    a('v_min_u32 v8, 55, v1')
    a(f'v_add_u32 v8, s{S_T+7}, v8')
    a('v_lshlrev_b32 v8, 1, v8')
    a(f'global_load_short_d16_hi v20, v8, s[{P_C}:{P_C+1}]')
    a('v_lshrrev_b32 v13, 3, v1')
    a(f'v_add_u32 v8, s{S_T+7}, v13')
    a('v_mul_u32_u24 v12, 5376, v8')
    a('v_and_b32 v8, 7, v1')
    a('v_lshl_add_u32 v12, v8, 4, v12')
    job_setup(SJ)
    for it in range(4): job_load(it)
    row_addr()
    a.wait(lg=0)
    a(f's_add_u32 s{S_TAG}, s{S_TAG}, 1')
    for o in row_part1():
        if o == 'XG':
            a.barrier()
            for o2 in row_part2(): a(o2)
        else: a(o)
    for it in range(4, 7): job_load(it)
    stamp('sp row')
    a(f'v_mul_f32 v21, {fhex(-1.4426950408889634)}, v20')
    a('v_exp_f32 v21, v21')
    a('v_add_f32 v21, 1.0, v21')
    a('v_rcp_f32 v21, v21')
    a('v_mul_f32 v21, v20, v21')
    round_bf16(21)
    a(f's_lshl_b32 s{S_T+8}, s{S_WAVE}, 8')
    a(f'v_lshl_add_u32 v22, v1, 2, s{S_T+8}')
    a('ds_write_b32 v22, v21')
    a(f'v_lshl_add_u32 v22, v13, 2, s{S_T+8}')
    for it in range(7):
        a(f'ds_read_b32 v{40+it}, v22 offset:{32*it}')
    job_compute(0)
    stamp('sp gemv')
    a(f's_cmp_lt_u32 s{SJ}, 28')
    a('s_cbranch_scc1 L_spw')
    st = a.snap()
    for n in range(1, 4):
        a(f's_add_u32 s{S_T+7}, s{SJ}, {4*n}')
        if n == 3:
            a(f's_cmp_ge_u32 s{S_T+7}, 42')
            a('s_cbranch_scc1 L_sp2')
        job_setup(S_T + 7)
        for it in range(7): job_load(it)
        job_compute(n)
    a('s_branch L_sp2')
    a.label('L_spw')
    a.restore(st)
    a('v_lshrrev_b32 v9, 5, v1')
    a('v_bfe_u32 v10, v1, 4, 1')
    a('v_lshl_add_u32 v9, v9, 2, v10')
    a('v_bfe_u32 v10, v1, 2, 2')
    a('v_lshl_add_u32 v9, v9, 2, v10')
    a('v_mul_u32_u24 v9, 896, v9')
    a('v_and_b32 v10, 3, v1')
    a('v_lshl_add_u32 v9, v10, 3, v9')
    a(f's_lshr_b32 s{S_T+8}, s{S_WAVE}, 2')
    a(f's_and_b32 s{S_T+9}, s{S_WAVE}, 3')
    a(f's_mul_i32 s{S_T+10}, s{S_T+8}, {32*896}')
    a(f's_mul_i32 s{S_T+11}, s{S_T+9}, {7*32}')
    a(f's_add_u32 s{S_T+10}, s{S_T+10}, s{S_T+11}')
    a(f'v_add_u32 v9, s{S_T+10}, v9')
    a(f's_lshl_b32 s{S_T+10}, s{S_W1D}, 1')
    a(f's_add_u32 s{S_T+10}, s{S_T+10}, s{S_T+8}')
    a(f's_lshr_b32 s{S_T+8}, s{S_T+10}, 3')
    a(f's_lshl_b32 s{S_T+8}, s{S_T+8}, 2')
    a(f's_add_u32 s{S_T+8}, s{S_T+8}, s{S_T+9}')
    a(f's_mul_i32 s{S_T+8}, s{S_T+8}, {7*8192}')
    a(f's_and_b32 s{S_T+10}, s{S_T+10}, 7')
    a(f's_lshl_b32 s{S_T+10}, s{S_T+10}, 10')
    a(f's_add_u32 s{S_T+8}, s{S_T+8}, s{S_T+10}')
    a(f's_add_u32 s{S_T+8}, s{S_T+8}, {WS_WDF}')
    a.force_wait(vm=0)
    a('s_barrier')
    for i in range(7):
        a(f'ds_read_b64_tr_b16 v[{128+4*i}:{129+4*i}], v9 offset:{16384 + 32*i}')
        a(f'ds_read_b64_tr_b16 v[{130+4*i}:{131+4*i}], v9 offset:{16384 + 32*i + 8*896}')
    for i in range(7):
        a(f'buffer_store_dwordx4 v[{128+4*i}:{131+4*i}], v2, {WSR}, s{S_T+8} offen sc1')
        if i < 6: a(f's_add_u32 s{S_T+8}, s{S_T+8}, 8192')
    mk_wd = a.vm_mark()
    a.wait_mark(mk_wd)
    a('s_barrier')
    st = a.snap()
    a(f's_cmp_lg_u32 s{S_WAVE}, 0')
    a('s_cbranch_scc1 L_fw')
    a(f's_lshr_b32 s{S_T+8}, s{SJ}, 3')
    a(f's_lshl_b32 s{S_T+8}, s{S_T+8}, 7')
    a(f's_and_b32 s{S_T+9}, s{SJ}, 7')
    a(f's_lshl_b32 s{S_T+9}, s{S_T+9}, 2')
    a(f's_add_u32 s{S_T+8}, s{S_T+8}, s{S_T+9}')
    a(f'v_mov_b32 v10, {WS_FW}')
    a(f'v_mov_b32 v11, s{S_TAG}')
    a('s_mov_b64 exec, 1')
    a(f'buffer_store_dword v11, v10, {WSR}, s{S_T+8} offen sc1')
    a('s_mov_b64 exec, -1')
    a.label('L_fw')
    a.restore(st)
    stamp('sp wd')
    a(f's_bitcmp1_b32 s{S_W1D}, 1')
    a(f's_cselect_b32 s{SRD_A}, s{P_WU}, s{P_WG}')
    a(f's_cselect_b32 s{SRD_A+1}, s{P_WU+1}, s{P_WG+1}')
    a(f's_mov_b32 s{SRD_A+2}, {448*3584}')
    a(f's_lshr_b32 s{S_T+8}, s{S_W1D}, 2')
    a(f's_lshl_b32 s{S_T+8}, s{S_T+8}, 9')
    a(f's_lshl_b32 s{S_T+9}, s{S_WAVE}, 6')
    a(f's_add_u32 s{S_T+8}, s{S_T+8}, s{S_T+9}')
    a(f's_and_b32 s{S_T+9}, s{S_W1D}, 1')
    a(f's_mul_i32 s{S_T+9}, s{S_T+9}, {14*16*3584}')
    a(f's_add_u32 s{S_T+8}, s{S_T+8}, s{S_T+9}')
    a(f's_mul_i32 s{S_WDD}, s{S_WAVE}, {14*1024}')
    a(f's_add_u32 s{S_WDD}, s{S_WDD}, 16384')
    wsrc_addr(9, 10)
    for k in range(14):
        a(f's_add_u32 m0, s{S_WDD}, {1024*k}')
        a(f'buffer_load_dwordx4 v9, {AR}, s{S_T+8} offen lds')
        if k < 13: a(f's_add_u32 s{S_T+8}, s{S_T+8}, {16*3584}')
    a.force_wait(vm=0, lg=0)
    stamp('sp gemv2')
    a.allow_opsel = False
    a('v_min_u32 v12, 447, v0')
    a('v_lshlrev_b32 v11, 3, v12')
    a(f's_mov_b32 s{S_T+8}, {WS_MODP + 3*1792}')
    def issue():
        a(f'buffer_load_dwordx2 v[14:15], v11, {WSR}, s{S_T+8} offen sc1')
    def check():
        a(f'v_cmp_ne_u32 vcc, s{S_TAG}, v15')
    poll(issue, check, sleep=4)
    a('v_lshlrev_b32 v12, 2, v12')
    a('ds_write_b32 v12, v14 offset:8192')
    stamp('sp mod seen')
    a(f's_lshr_b32 s{S_T+9}, s{S_W1D}, 2')
    a(f's_lshl_b32 s{S_T+9}, s{S_T+9}, 3')
    a(f's_add_u32 s{S_T+9}, s{S_T+9}, s{S_WAVE}')
    a(f's_lshl_b32 s{S_T+9}, s{S_T+9}, 11')
    a(f's_bfe_u32 s{S_T+10}, s{S_W1D}, 0x10001')
    a(f's_lshl_b32 s{S_T+10}, s{S_T+10}, 10')
    a(f's_add_u32 s{S_T+9}, s{S_T+9}, s{S_T+10}')
    a(f's_and_b32 s{S_T+10}, s{S_W1D}, 1')
    a(f's_lshl_b32 s{S_T+11}, s{S_T+10}, 9')
    a(f's_add_u32 s{S_T+11}, s{S_T+11}, s{S_T+9}')
    a(f's_add_u32 s{S_T+11}, s{S_T+11}, {WS_WC}')
    wtr_addr(9, 10)
    a(f'v_add_u32 v9, s{S_WDD}, v9')
    for k in range(14):
        a(f'ds_read_b64_tr_b16 v[{128+4*k}:{129+4*k}], v9 offset:{1024*k}')
        a(f'ds_read_b64_tr_b16 v[{130+4*k}:{131+4*k}], v9 offset:{1024*k+256}')
    a('v_lshrrev_b32 v13, 5, v1')
    a('v_and_b32 v14, 31, v1')
    a('v_lshlrev_b32 v12, 4, v13')
    a('v_add_u32 v11, 896, v12')
    a('v_cmp_eq_u32 vcc, 0, v14')
    a('v_cndmask_b32 v12, v12, v11, vcc')
    a(f's_mul_i32 s{S_T+8}, s{S_T+10}, {14*32}')
    a(f'v_add_u32 v12, s{S_T+8}, v12')
    a.barrier()
    for k in range(14):
        a(f'ds_read_b128 v[{16+4*k}:{19+4*k}], v12 offset:{8192 + 32*k}')
    for k in range(14):
        a(f'v_mfma_f32_32x32x16_bf16 v[192:207], v[{128+4*k}:{131+4*k}], v[{16+4*k}:{19+4*k}], {"0" if k == 0 else "v[192:207]"}')
    a(f's_lshl_b32 s{S_T+8}, s{S_WAVE}, 8')
    a('v_lshlrev_b32 v8, 7, v14')
    a('v_lshl_add_u32 v8, v13, 4, v8')
    a(f'v_add_u32 v8, s{S_T+8}, v8')
    a(f'v_lshl_add_u32 v9, v14, 2, s{S_T+8}')
    a('v_cmp_gt_u32 vcc, 2, v14')
    a('s_and_saveexec_b64 s[84:85], vcc')
    for z in range(4):
        a(f'ds_write_b128 v8, v[{192+4*z}:{195+4*z}] offset:{32*z}')
    a('s_mov_b64 exec, -1')
    a('ds_read_b32 v16, v9')
    a('ds_read_b32 v18, v9 offset:128')
    a(f'v_mov_b32 v17, s{S_TAG}')
    a(f'v_mov_b32 v19, s{S_TAG}')
    for r in (16, 18):
        a(f'v_cvt_pk_bf16_f32 v20, v{r}, v{r}')
        a('v_lshlrev_b32 v20, 16, v20')
        a(f'v_sub_f32 v21, v{r}, v20')
        a(f'v_cvt_pk_bf16_f32 v{r}, v20, v21')
    a('s_mov_b32 exec_hi, 0')
    a(f'buffer_store_dwordx4 v[16:19], v2, {WSR}, s{S_T+11} offen sc1')
    a('s_mov_b64 exec, -1')
    stamp('sp stored')
    a.label('L_sp2')
    a.force_wait(vm=0, lg=0)
    a(f's_lshl_b32 s{S_RT}, s{S_X8}, 2')
    a(f's_add_u32 s{S_RT}, s{S_RT}, s{S_I}')
    a(f's_sub_u32 s{S_RT}, s{S_RT}, 28')
    dma_addr(4, 5, 6)
    tr_addr()
    a(f's_and_b32 s{S_T+9}, s{S_WAVE}, 3')
    a(f's_lshl_b32 s{S_T+9}, s{S_T+9}, 5')
    a(f'v_xor_b32 v9, s{S_T+9}, v5')
    a(f's_lshr_b32 s{S_T+9}, s{S_WAVE}, 2')
    a(f's_lshl_b32 s{S_T+9}, s{S_T+9}, 12')
    a(f'v_add_u32 v9, s{S_T+9}, v9')
    a('v_mov_b32 v10, 0'); a('v_mov_b32 v11, 0')
    a('v_mov_b32 v3, 0x3f803f80')
    a(f's_lshl_b32 s{S_T+12}, s{S_WAVE}, 15')
    a(f's_lshl_b32 s{S_T+10}, s{S_RT}, 7')
    a(f's_add_u32 s{S_T+12}, s{S_T+12}, s{S_T+10}')
    a(f's_add_u32 s{S_T+12}, s{S_T+12}, {WS_X1T}')
    a(f's_lshl_b32 s{S_T+14}, s{S_WAVE}, 10')
    st = a.snap()
    a(f's_cmp_lg_u32 s{S_WAVE}, 0')
    a('s_cbranch_scc1 L_sp4')
    a(f'v_mov_b32 v13, {WS_EPOCH}')
    poll(lambda: a(f'buffer_load_dword v14, v13, {WSR}, 0 offen sc1'), lambda: a(f'v_cmp_ne_u32 vcc, s{S_TAG}, v14'), sleep=2)
    a.label('L_sp4')
    a.restore(st)
    a('s_barrier')
    for i in range(7):
        a(f's_add_u32 m0, s{S_T+14}, {8192*i}')
        a(f'buffer_load_dwordx4 v4, {WSR}, s{S_T+12} offen sc1 lds')
        if i < 6:
            a(f's_add_u32 s{S_T+12}, s{S_T+12}, {8*32768}')
    a.force_wait(vm=0)
    a('s_barrier')
    for i in range(7):
        for h in range(2):
            a(f'ds_read_b64_tr_b16 v[{16+4*i+2*h}:{17+4*i+2*h}], v9 offset:{i*8192 + h*512}')
    for i in range(28):
        a(f'v_dot2c_f32_bf16 v10, v{16+i}, v3')
        a(f'v_dot2c_f32_bf16 v11, v{16+i}, v{16+i}')
    for sw in ('v_permlane16_swap_b32', 'v_permlane32_swap_b32'):
        a('v_mov_b32 v12, v10'); a('v_mov_b32 v13, v11')
        a(f'{sw} v10, v12'); a(f'{sw} v11, v13')
        a('v_pk_add_f32 v[10:11], v[10:11], v[12:13]')
    a('v_lshlrev_b32 v14, 3, v1')
    a('v_and_b32 v15, 127, v14')
    a(f's_lshl_b32 s{S_T+9}, s{S_WAVE}, 7')
    a(f'v_add_u32 v15, s{S_T+9}, v15')
    a(f'ds_write_b64 v15, v[10:11] offset:{L_WR}')
    a.barrier()
    a(f's_cmp_lg_u32 s{S_WAVE}, 0')
    a('s_cbranch_scc1 L_spend')
    a(f'ds_read_b64 v[10:11], v14 offset:{L_WR}')
    a(f'ds_read_b64 v[12:13], v14 offset:{L_WR + 512}')
    a('v_pk_add_f32 v[10:11], v[10:11], v[12:13]')
    a(f'v_mul_f32 v10, {fhex(1/448)}, v10')
    a(f'v_mul_f32 v11, {fhex(1/448)}, v11')
    std_from(10, 11)
    a(f's_lshl_b32 s{S_T+9}, s{S_RT}, 9')
    a(f's_add_u32 s{S_T+9}, s{S_T+9}, {WS_ST2}')
    a('v_cvt_pk_bf16_f32 v10, -v10, v11')
    a(f'v_mov_b32 v11, s{S_TAG}')
    a(f'buffer_store_dwordx2 v[10:11], v14, {WSR}, s{S_T+9} offen sc1')
    stamp('sp st2')
    a.label('L_spend')
    stamp_flush()
    a.label('L_end')
    a('s_endpgm')
    ref = open('ref_stub.s').read()
    head = ''.join(l + '\n' for l in ref.split('\n') if l.startswith(';') and '@launch' not in l and 'Override' not in l and 'grid=ceil' not in l)
    txt = head + f'; @launch grid=(256,1,1) block=(512,1,1) lds={LDS_BYTES}\n' + HEADER + kernel_text(KN, a.text())
    txt += '.section .rodata,"a"\n' + kernel_desc(KN, 256, 102)
    return txt

if __name__ == '__main__':
    out = sys.argv[1] if len(sys.argv) > 1 else 'adaLN_cond__ssm_conv_s4__glu_gated_bilinear__prompt.s'
    dbg = 'debug' in sys.argv; stm = 'stamps' in sys.argv
    open(out, 'w').write(build(debug=dbg, stamps=stm, exp=sys.argv))
    print('wrote', out)
```
